```python
import torch

def _softmax(x, axis=-1):
    return torch.softmax(x, dim=axis)

def _gelu(x):
    return torch.nn.functional.gelu(x, approximate='tanh')

def _silu(x):
    return torch.nn.functional.silu(x)

def _sigmoid(x):
    return torch.sigmoid(x)

def _layernorm(x, axis=-1, eps=1e-05):
    m = x.mean(dim=axis, keepdim=True)
    v = x.var(dim=axis, keepdim=True, unbiased=False)
    return (x - m) / torch.sqrt(v + eps)

def _scatter_add(tgt, idx, src, axis=0):
    return tgt.clone().index_add_(axis, idx, src)

def _segment_sum(src, seg, n):
    out = torch.zeros((n,) + src.shape[1:], dtype=src.dtype)
    return out.index_add_(0, seg, src)

def _pad(x, pw):
    flat = tuple((v for pair in reversed(pw) for v in pair))
    return torch.nn.functional.pad(x, flat)
kernel_name = 'standalone__swin_window_attn__vision'

def setup_inputs():

    _w = lambda a: (lambda t: t.to(torch.bfloat16) if t.is_floating_point() else t)(torch.as_tensor(a))
    H = W = 512 // 8 * 8
    C, win = (192, 8)
    return {'x': _w((lambda *s: torch.randn(*s, dtype=torch.bfloat16) * 0.2)(1, H, W, C)), 'wqkv': _w((lambda *s: torch.randn(*s, dtype=torch.bfloat16) * 0.2)(C, 3 * C)), 'wo': _w((lambda *s: torch.randn(*s, dtype=torch.bfloat16) * 0.05)(C, C))}

def reference(x, wqkv, wo):
    B, H, W, C = x.shape
    win = 8
    nh, nw = (H // win, W // win)
    xw = (lambda x, *d: x.permute(*d))(x.reshape(B, nh, win, nw, win, C), 0, 1, 3, 2, 4, 5)
    xw = xw.reshape(B * nh * nw, win * win, C)
    qkv = xw @ wqkv
    q, k, v = (qkv[..., :C].clone(), qkv[..., C:2 * C].clone(), qkv[..., 2 * C:].clone())
    scale = C ** (-0.5)
    p = _softmax(torch.einsum('bqc,bkc->bqk', q, k) * scale, axis=-1)
    o = torch.einsum('bqk,bkc->bqc', p, v) @ wo
    o = (lambda x, *d: x.permute(*d))(o.reshape(B, nh, nw, win, win, C), 0, 1, 3, 2, 4, 5)
    return o.reshape(B, H, W, C)
```

```python
import re, sys
NAME = "standalone__swin_window_attn__vision"
STB = 0x1000000
def desc(name, vg=64, sg=100):
    return """.p2align 6
.amdhsa_kernel %s
  .amdhsa_next_free_vgpr %d
  .amdhsa_next_free_sgpr %d
  .amdhsa_accum_offset %d
  .amdhsa_group_segment_fixed_size 0
  .amdhsa_kernarg_size 48
  .amdhsa_user_sgpr_count 2
  .amdhsa_user_sgpr_kernarg_segment_ptr 1
  .amdhsa_system_sgpr_workgroup_id_x 1
.end_amdhsa_kernel
""" % (name, vg, sg, min(vg, 256))

def stamp_start():
    return "    s_memrealtime s[94:95]\n"
def stamp_end(slot, idx_expr):
    return """    s_waitcnt vmcnt(0) lgkmcnt(0)
    s_memrealtime s[96:97]
    s_load_dwordx2 s[88:89], s[0:1], 40
%s
    s_lshl_b32 s93, s93, 4
    s_waitcnt lgkmcnt(0)
    s_add_u32 s88, s88, %d
    s_addc_u32 s89, s89, 0
    s_mov_b32 s90, 0x40000
    s_mov_b32 s91, 0x00020000
    v_mov_b32 v0, s94
    v_mov_b32 v1, s95
    v_mov_b32 v2, s96
    v_mov_b32 v3, s97
    v_mov_b32 v4, s93
    s_mov_b64 exec, 1
    buffer_store_dwordx4 v[0:3], v4, s[88:91], 0 offen
    s_waitcnt vmcnt(0)
""" % (idx_expr, STB + slot * 0x40000)

def spin_kernel(slot, count, field, latest, D):
    op = "v_min_u32" if latest else "v_max_u32"
    sop = "s_min_u32" if latest else "s_max_u32"
    init = -1 if latest else 0
    L = """.globl spin_kernel
.p2align 8
.type spin_kernel,@function
spin_kernel:
    s_cmp_ge_u32 s2, 1
    s_cbranch_scc1 L_spin_end
    s_load_dwordx2 s[4:5], s[0:1], 40
    s_memrealtime s[10:11]
    s_waitcnt lgkmcnt(0)
    s_add_u32 s4, s4, %d
    s_addc_u32 s5, s5, 0
    s_mov_b32 s6, %d
    s_mov_b32 s7, 0x00020000
    v_lshlrev_b32 v1, 4, v0
    v_mov_b32 v2, %d
    s_mov_b32 s12, 0
L_spin_rd:
    v_cmp_gt_u32 vcc, s6, v1
    s_and_saveexec_b64 s[14:15], vcc
    buffer_load_dword v3, v1, s[4:7], 0 offen offset:%d
    s_waitcnt vmcnt(0)
    v_sub_u32 v3, s10, v3
    %s v2, v2, v3
    s_mov_b64 exec, s[14:15]
    v_add_u32 v1, 1024, v1
    s_add_u32 s12, s12, 1024
    s_cmp_lt_u32 s12, s6
    s_cbranch_scc1 L_spin_rd
    s_nop 4
    v_readlane_b32 s16, v2, 0
""" % (STB + slot * 0x40000, count * 16, init, field, op)
    for i in range(1, 64):
        L += "    v_readlane_b32 s17, v2, %d\n    s_nop 1\n    %s s16, s16, s17\n" % (i, sop)
    L += """    s_sub_u32 s16, s10, s16        ; ref = now0 - d
L_spin_lp:
    s_memrealtime s[18:19]
    s_waitcnt lgkmcnt(0)
    s_sub_u32 s18, s18, s16
    s_cmp_lt_u32 s18, %d
    s_cbranch_scc1 L_spin_lp
L_spin_end:
    s_endpgm
""" % D
    return L

def instrument(asm, extra_first=None):
    asm = asm.replace("    s_cbranch_scc1 L_prep_end\n", "    s_cbranch_scc1 L_prep_end\n" + stamp_start(), 1)
    asm = asm.replace("L_prep_end:\n", stamp_end(0, "    s_mov_b32 s93, s2") + "L_prep_end:\n", 1)
    asm = asm.replace(".amdhsa_next_free_sgpr 40", ".amdhsa_next_free_sgpr 100")
    asm = asm.replace("    s_cbranch_scc1 L_end\n", "    s_cbranch_scc1 L_end\n" + stamp_start(), 1)
    asm = asm.replace("L_end:\n", stamp_end(1, "    s_lshl_b32 s93, s2, 2\n    s_add_u32 s93, s93, s49") + "L_end:\n", 1)
    return asm

def add_kernel(asm, name, text, launch, vg, first=False):
    lines = asm.split("\n")
    idx = [i for i, l in enumerate(lines) if l.startswith("; @launch")]
    pos = idx[0] if first else idx[-1] + 1
    lines.insert(pos, "; @launch kernel=%s %s" % (name, launch))
    asm = "\n".join(lines)
    asm = asm.replace('.section .rodata,"a"\n', text + '.section .rodata,"a"\n', 1)
    asm += desc(name, vg)
    return asm

def with_spin(asm, slot, count, field, latest, D=15000):
    return add_kernel(asm, "spin_kernel", spin_kernel(slot, count, field, latest, D), "grid=(1,1,1) block=(64,1,1) lds=0", 64)

if __name__ == "__main__":
    src = open(sys.argv[1]).read(); out = sys.argv[2]
    a = instrument(src)
    open(out + "_ps.s", "w").write(with_spin(a, 0, 144, 0, False))
    open(out + "_pe.s", "w").write(with_spin(a, 0, 144, 8, True))
    open(out + "_ms.s", "w").write(with_spin(a, 1, 1024, 0, False))
    open(out + "_ml.s", "w").write(with_spin(a, 1, 1024, 0, True))
    open(out + "_m1.s", "w").write(with_spin(a, 1, 1024, 8, False))
    open(out + "_me.s", "w").write(with_spin(a, 1, 1024, 8, True))
```

```python
import re

def regs(kind, base, n=1):
    return [(kind, base + i) for i in range(n)]
def V(b, n=1): return regs('v', b, n)
def A(b, n=1): return regs('a', b, n)
def S(b, n=1): return regs('s', b, n)

def rtxt(kind, base, n=1):
    if n == 1: return "%s%d" % (kind, base)
    return "%s[%d:%d]" % (kind, base, base + n - 1)

COST = dict(label=0, bar=12, mfma=8, valu=4, trans=8, perm=4, dsr=4, dsw=20, vld=4, vst=20, vst1=12, salu=4, dma=20, wait=4, nop=4, br=4)
MEMK = ('dsr', 'dsw', 'vld', 'vst', 'vst1', 'dma')
MEM_MFMA_GAP = 8

class Op:
    __slots__ = ("text", "kind", "reads", "writes", "cost", "idx", "preds", "succs", "alap", "asap", "pin",
                 "deadline", "earliest", "emitted", "t", "tag", "creads", "passes", "grp", "req", "lat", "emi")
    def __init__(self, text, kind, reads=(), writes=(), deadline=None, earliest=None, tag="", creads=(), passes=8):
        self.text = text; self.kind = kind
        self.reads = list(reads); self.writes = list(writes)
        self.creads = list(creads)
        self.cost = COST[kind]
        self.preds = []; self.succs = []
        self.deadline = deadline; self.earliest = earliest
        self.pin = None; self.emitted = False; self.t = None; self.tag = tag
        self.passes = passes
        self.grp = 'cur'; self.req = None; self.lat = None; self.emi = 0
    def __repr__(self): return self.text

def raw_latency(p, c):
    if p.lat is not None: return p.lat
    if p.kind == 'mfma':
        if c.kind == 'mfma' and set(c.creads) & set(p.writes) and not (set(c.reads) - set(c.creads)) & set(p.writes):
            return 0
        return p.passes * 4 + 40
    if p.kind == 'dsr': return 140
    if p.kind == 'vld': return 4000
    if p.kind == 'dma': return 1200 if c.kind == 'bar' else 4
    if p.kind == 'trans': return 12
    if p.kind in ('valu', 'perm'):
        if c.kind == 'mfma' or c.kind == 'perm': return 12
        return 4
    return 4

def build_dag(ops):
    last_w = {}; readers = {}
    for i, o in enumerate(ops):
        o.idx = i; o.preds = []; o.succs = []
    def edge(p, c, lat):
        if p is c: return
        c.preds.append((p, lat)); p.succs.append((c, lat))
    for o in ops:
        for r in o.reads:
            if r in last_w: edge(last_w[r], o, raw_latency(last_w[r], o))
        for r in o.writes:
            if r in last_w:
                p = last_w[r]
                lat = 4
                if p.kind == 'mfma' and o.kind != 'mfma': lat = p.passes * 4 + 40
                if p.kind == 'mfma' and o.kind == 'mfma': lat = 0 if r in o.creads else p.passes*4+16
                if p.kind in ('dsr', 'vld'): lat = raw_latency(p, o)
                edge(p, o, lat)
            for q in readers.get(r, []):
                lat = 4
                if q.kind == 'mfma': lat = 8
                if q.kind == 'vld' and False: lat = 4
                edge(q, o, lat)
        for r in o.reads:
            readers.setdefault(r, []).append(o)
        for r in o.writes:
            last_w[r] = o; readers[r] = []
    return ops

def schedule(ops, mfma_period=32, budget=24, verbose=False, horizon=None, merge_slack=220, mem_bias=400, urgent=300, dsw_gap=56, vst_gap=60, vst1_gap=28, lds_queue=40, slack=0, short=False):
    build_dag(ops)
    mf = [o for o in ops if o.kind == 'mfma']
    for i, o in enumerate(mf): o.pin = i * mfma_period
    end = len(mf) * mfma_period if horizon is None else horizon
    for o in reversed(ops):
        if o.kind == 'mfma':
            o.alap = o.pin; continue
        a = end + 10000
        for (c, lat) in o.succs:
            a = min(a, c.alap - max(lat, o.cost))
        if o.deadline is not None: a = min(a, o.deadline)
        o.alap = a
    out = []
    t = 0
    ready_t = {}
    npred = {id(o): len(o.preds) for o in ops}
    avail = [o for o in ops if not o.preds and o.kind != 'mfma']
    def rt(o):
        r = 0
        for (p, lat) in o.preds: r = max(r, p.t + lat)
        if o.earliest is not None: r = max(r, o.earliest)
        return r
    hs = State()
    pend = {}
    res = dict(dsw=-999, vst=-999, lds=0)
    def res_ok(o, tt):
        if o.kind == 'dsw' and tt < res['dsw'] + dsw_gap: return False
        if o.kind == 'vst' and tt < res['vst'] + vst_gap: return False
        if o.kind == 'vst1' and tt < res['vst'] + vst1_gap: return False
        if o.kind in ('dsr', 'dsw') and res['lds'] - tt > lds_queue: return False
        return True
    def res_upd(o, tt):
        if o.kind == 'dsw': res['dsw'] = tt
        if o.kind in ('vst', 'vst1'): res['vst'] = tt
        if o.kind in ('dsr', 'dsw'): res['lds'] = max(res['lds'], tt) + (16 if o.kind == 'dsr' else 40)
    def extra(o):
        return 4 if any(r in pend for r in o.reads + o.writes) else 0
    def emit(o, tt):
        o.t = tt; o.emitted = True; out.append(o)
        track(hs, o); res_upd(o, tt)
        hit = [pend[r] for r in o.reads + o.writes if r in pend]
        if hit:
            tmax = max(max(hit), tt - merge_slack)
            for r in [r for r, x in pend.items() if x <= tmax]: del pend[r]
        if o.kind == 'dsr':
            for r in o.writes: pend[r] = tt
        for (c, lat) in o.succs:
            npred[id(c)] -= 1
            if npred[id(c)] == 0 and c.kind != 'mfma': avail.append(c)
    def force(o):
        nonlocal t
        need = []
        seen = set()
        def rec(x):
            for (p, lat) in x.preds:
                if not p.emitted and id(p) not in seen:
                    seen.add(id(p)); rec(p); need.append(p)
        rec(o)
        need.sort(key=lambda x: x.idx)
        for p in need:
            assert p.kind != 'mfma', ("backbone order violates deps", o.text, p.text)
            tt = max(t, rt(p)) if False else t
            if p in avail: avail.remove(p)
            tt = max(t, rt(p))
            emit(p, tt); t = tt + p.cost
            stats['forced'] += 1
    stats = dict(forced=0, stall=0)
    pipe_free = 0
    for mi, m in enumerate(mf):
        force(m)
        tt = max(t, pipe_free, rt(m))
        if tt > max(t, pipe_free): stats['stall'] += tt - max(t, pipe_free)
        if tt > pipe_free and mi > 0: stats.setdefault('late', []).append((mi, tt - pipe_free, m.tag))
        emit(m, tt)
        t = tt + m.cost
        pipe_free = tt + m.passes * 4
        nxt = mf[mi + 1] if mi + 1 < len(mf) else None
        limit = pipe_free + slack
        if nxt is not None and any(r in pend for r in nxt.reads): limit -= 4
        while True:
            ok = [o for o in avail if rt(o) <= t and o.emi <= mi and need_states(hs, o) <= 0 and res_ok(o, t)]
            if short:
                mem = [o for o in ok if o.kind in MEMK and t <= tt + m.cost + (4 if False else 0) and (limit == pipe_free + slack or o.cost > 4 or True)]
            else:
                mem = [o for o in ok if o.kind in MEMK and t + o.cost + (4 if o.kind in ('dsw', 'vst', 'dma') else MEM_MFMA_GAP) <= limit + (4 if o.kind in ('dsw', 'vst', 'dma') and t == tt + m.cost else 0)]
            oth = [o for o in ok if o.kind not in MEMK and t + o.cost + extra(o) <= limit]
            mem.sort(key=lambda o: (o.alap, o.idx)); oth.sort(key=lambda o: (o.alap, o.idx))
            pick = None
            if mem and (not oth or mem[0].alap <= oth[0].alap + mem_bias or mem[0].alap <= t + urgent): pick = mem[0]
            elif oth: pick = oth[0]
            elif mem: pick = mem[0]
            if pick is None: break
            avail.remove(pick)
            c = extra(pick)
            emit(pick, t + c); t += pick.cost + c
    while avail:
        avail.sort(key=lambda o: (o.alap, o.idx))
        o = avail.pop(0)
        tt = max(t, rt(o)); emit(o, tt); t = tt + o.cost
    assert all(o.emitted for o in ops), [o.text for o in ops if not o.emitted][:5]
    stats['end'] = t; stats['pipe_end'] = pipe_free
    return out, stats

VALU_KINDS = ('valu', 'trans', 'perm')

class State:
    def __init__(self):
        self.pos = 0
        self.lastw = {}
        self.cread = {}
        self.lgkm = []
        self.vm = []
        self.pend = {}
        self.time = 0
        self.seq = 0
        self.mfree = -100
        self.moff = 0

MFMA_STATES = 7
def need_states(st, o):
    return _need_states(st, o)

def mpos_of(st, o):
    m = st.pos + st.moff
    if o.kind == 'mfma': m = max(m, st.mfree)
    return m

def advance_mfma(st, o):
    if o.kind == 'mfma':
        m = mpos_of(st, o); st.moff = m - st.pos; st.mfree = m + (o.passes - 1)

def _need_states(st, o):
    need = 0
    def req(r, n, table=None):
        nonlocal need
        e = (table or st.lastw).get(r)
        return e
    for r in o.reads:
        e = st.lastw.get(r)
        if e is None: continue
        pos, p, mp = e
        dist = (mpos_of(st, o) - mp - 1) if p.kind == 'mfma' else (st.pos - pos - 1)
        n = 0
        if p.kind == 'mfma':
            if o.kind == 'mfma':
                if r in o.creads and not (r in [x for x in o.reads if x not in o.creads]):
                    same = (p.writes == o.creads)
                    n = 0 if same else p.passes + 2
                else:
                    n = p.passes + 4
            else:
                n = p.passes + 4
        elif p.kind in VALU_KINDS:
            if r[0] in ('v', 'a'):
                if o.kind == 'mfma': n = 2
                elif o.kind == 'perm': n = 2
                elif p.kind == 'trans' and o.kind != 'trans': n = 1
                elif p.kind == 'trans': n = 1
                if 'readlane' in o.text or 'readfirstlane' in o.text: n = max(n, 1)
                if 'dpp' in o.text or 'quad_perm' in o.text or 'row_' in o.text: n = max(n, 2)
            else:
                if o.kind in ('vld', 'vst', 'vst1', 'dma'): n = 5
                elif o.kind in VALU_KINDS: n = 2
                else: n = 2
        elif p.kind == 'salu':
            if r == 'm0' and o.kind in ('dma',): n = 1
        need = max(need, n - dist)
    for r in o.writes:
        e = st.lastw.get(r)
        if e is not None:
            pos, p, mp = e
            dist = (mpos_of(st, o) - mp - 1) if p.kind == 'mfma' else (st.pos - pos - 1)
            if p.kind == 'mfma' and not (o.kind == 'mfma' and r in o.creads and p.writes == o.creads):
                if o.kind == 'mfma':
                    n = p.passes + 2
                else:
                    n = p.passes + 4
                need = max(need, n - dist)
        e = st.cread.get(r)
        if e is not None and o.kind != 'mfma':
            pos, p, mp = e
            dist = mpos_of(st, o) - mp - 1
            need = max(need, (p.passes - 1) - dist)
        e = st.lastw.get(('stdata', r))
        if e is not None:
            pos, p, mp = e
            dist = st.pos - pos - 1
            need = max(need, 2 - dist)
    return need

def track(st, o):
    advance_mfma(st, o)
    mp = st.pos + st.moff
    for r in o.writes:
        if o.kind in ('dsr', 'vld'): st.lastw.pop(r, None)
        else: st.lastw[r] = (st.pos, o, mp)
        st.cread.pop(r, None)
    if o.kind == 'mfma':
        for r in o.creads: st.cread[r] = (st.pos, o, mp)
    st.pos += 1

def finalize(seq, st=None, tbase=0, merge_slack=220, vm_slack=3000, reqs=None, collect=None):
    if st is None: st = State()
    lines = []
    def younger(q, sq):
        for k, e_ in enumerate(q):
            if e_[0] == sq: return len(q) - 1 - k
        return None
    for i, o in enumerate(seq):
        if o.t is not None: st.time = max(st.time, tbase + o.t)
        needl = None; needv = None
        for r in list(o.reads) + list(o.writes):
            e = st.pend.get(r)
            if e is None: continue
            cnt, sq = e
            k = younger(st.lgkm if cnt == 'lgkm' else st.vm, sq)
            if k is None: continue
            if cnt == 'lgkm': needl = k if needl is None else min(needl, k)
            else: needv = k if needv is None else min(needv, k)
        if needl is not None:
            q = st.lgkm; k = needl
            while k > 0:
                cand = q[len(q) - k]
                if cand[1] + merge_slack <= st.time: k -= 1
                else: break
            needl = min(k, 15)
        if needv is not None:
            q = st.vm; k = needv
            while k > 0:
                cand = q[len(q) - k]
                if cand[2] == 'vld' and cand[1] + vm_slack <= st.time: k -= 1
                else: break
            needv = min(k, 63)
        rn = 0
        if reqs is not None:
            rv, rl, rn = reqs[i]
            if rv is not None: needv = rv if needv is None else min(needv, rv)
            if rl is not None: needl = rl if needl is None else min(needl, rl)
        if needl is not None or needv is not None:
            parts = []
            if needv is not None:
                parts.append("vmcnt(%d)" % needv)
                st.vm = st.vm[max(0, len(st.vm) - needv):] if needv > 0 else []
            if needl is not None:
                parts.append("lgkmcnt(%d)" % needl)
                st.lgkm = st.lgkm[max(0, len(st.lgkm) - needl):] if needl > 0 else []
            lines.append("    s_waitcnt " + " ".join(parts))
            st.pos += 1; st.time += 4
        k = max(need_states(st, o), rn - (1 if (needl is not None or needv is not None) else 0) * 0)
        if collect is not None: collect.append((needv, needl, k))
        while k > 0:
            m = min(k, 16)
            lines.append("    s_nop %d" % (m - 1))
            st.pos += m; st.time += 4 * m; k -= m
        if o.kind == 'label':
            lines.append(o.text); continue
        lines.append("    " + o.text + (("    ; " + o.tag) if o.tag else ""))
        st.seq += 1
        advance_mfma(st, o)
        mp = st.pos + st.moff
        for r in o.writes:
            st.pend.pop(r, None)
            if (o.kind in ('dsr', 'vld', 'dma') and isinstance(r, tuple)) or (o.kind == 'dsw' and isinstance(r, tuple) and r[0] == 'IMG'):
                st.pend[r] = ('lgkm' if o.kind in ('dsr', 'dsw') else 'vm', st.seq)
                st.lastw.pop(r, None)
            else:
                st.lastw[r] = (st.pos, o, mp)
            st.cread.pop(r, None)
        if o.kind == 'mfma':
            for r in o.creads: st.cread[r] = (st.pos, o, mp)
        if o.kind == 'vst' and ('dwordx4' in o.text or 'dwordx3' in o.text):
            for r in o.reads: st.lastw[('stdata', r)] = (st.pos, o, mp)
        if o.kind in ('dsr', 'dsw'): st.lgkm.append((st.seq, st.time))
        if o.kind in ('vld', 'vst', 'vst1', 'dma'):
            st.vm.append((st.seq, st.time, o.kind)); st.maxvm = max(getattr(st, 'maxvm', 0), len(st.vm))
        if o.kind in ('dsr', 'dsw'): st.maxlg = max(getattr(st, 'maxlg', 0), len(st.lgkm))
        if o.text.startswith("s_waitcnt"):
            m = re.search(r"vmcnt\((\d+)\)", o.text)
            if m:
                k = int(m.group(1)); st.vm = st.vm[max(0, len(st.vm) - k):] if k > 0 else []
            m = re.search(r"lgkmcnt\((\d+)\)", o.text)
            if m:
                k = int(m.group(1)); st.lgkm = st.lgkm[max(0, len(st.lgkm) - k):] if k > 0 else []
        n = 1
        m = re.match(r"s_nop (\d+)", o.text)
        if m: n = int(m.group(1)) + 1
        st.pos += n; st.time += o.cost
    return lines

def merge_reqs(a, b):
    out = []
    for (v1, l1, n1), (v2, l2, n2) in zip(a, b):
        mn = lambda x, y: x if y is None else (y if x is None else min(x, y))
        out.append((mn(v1, v2), mn(l1, l2), max(n1, n2)))
    return out
```

```python
import sys, struct, math, argparse
sys.path.insert(0, "gen")
from sched import *

NAME = "standalone__swin_window_attn__vision"
DELTA = 25165824
XBYTES = 100663296
ROWB = 196608
WIMG = 147456
KAPPA = (192 ** -0.5) * math.log2(math.e)
NM = 768
P = 16
def f32hex(x): return "0x%08x" % struct.unpack("<I", struct.pack("<f", x))[0]

HEADER = """; Kernarg layout for this problem (48 bytes, ptrs only, base s[0:1]):
"""

def prep_kernel(stamp=False):
    L = []
    a = L.append
    a(".globl swin_prep_kernel\n.p2align 8\n.type swin_prep_kernel,@function\nswin_prep_kernel:")
    a("""    s_cmp_ge_u32 s2, 144
    s_cbranch_scc1 L_prep_end
    s_load_dwordx4 s[4:7], s[0:1], 8
    s_load_dwordx2 s[8:9], s[0:1], 40""")
    if stamp: a("    s_memrealtime s[36:37]")
    a("""    v_and_b32 v1, 15, v0              ; i
    v_lshrrev_b32 v2, 4, v0           ; g
    v_lshrrev_b32 v3, 2, v1
    v_lshlrev_b32 v3, 3, v3
    v_and_b32 v4, 3, v1
    v_add_u32 v3, v3, v4              ; 8*(i>>2) + (i&3)
    s_cmp_ge_u32 s2, 72
    s_cselect_b32 s20, 1, 0           ; isN
    s_cselect_b32 s21, 72, 0
    s_sub_u32 s21, s2, s21            ; z
    s_mul_i32 s22, s21, 43
    s_lshr_b32 s22, s22, 8            ; z / 6  (cb or b'')
    s_mul_i32 s23, s22, 6
    s_sub_u32 s23, s21, s23           ; s
    s_waitcnt lgkmcnt(0)
    s_mov_b32 s12, s4
    s_mov_b32 s13, s5
    s_mov_b32 s14, 221184
    s_mov_b32 s15, 0x00020000
    s_mov_b32 s16, s6
    s_mov_b32 s17, s7
    s_mov_b32 s18, 73728
    s_mov_b32 s19, 0x00020000
    s_mov_b32 s24, s8
    s_mov_b32 s25, s9
    s_mov_b32 s26, %d
    s_mov_b32 s27, 0x00020000
    ; A rows: c = 32 s + 8*(i>>2) + (i&3) + 4*hh'  ; byte = c*1152 + 16 g + (isN ? 768 : 0)
    s_lshl_b32 s28, s23, 5
    v_add_u32 v6, s28, v3
    s_movk_i32 s29, 1152
    v_mul_lo_u32 v6, v6, s29
    v_lshl_add_u32 v6, v2, 4, v6
    s_mul_i32 s30, s20, 768
    v_add_u32 v6, s30, v6
    v_add_u32 v7, 4608, v6            ; hh' = 1 : +4 rows""" % WIMG)
    for km in range(6):
        a("    buffer_load_dwordx4 v[%d:%d], v6, s[12:15], 0 offen offset:%d" % (16 + 4 * km, 19 + 4 * km, 64 * km))
        a("    buffer_load_dwordx4 v[%d:%d], v7, s[12:15], 0 offen offset:%d" % (40 + 4 * km, 43 + 4 * km, 64 * km))
    a("    s_cmp_eq_u32 s20, 1")
    a("    s_cbranch_scc1 L_prep_N")
    a("""    s_lshr_b32 s28, s22, 1
    s_lshl_b32 s28, s28, 5
    s_and_b32 s31, s22, 1
    s_lshl_b32 s31, s31, 2
    s_add_u32 s28, s28, s31
    v_add_u32 v8, s28, v3
    v_mul_lo_u32 v8, v8, s29
    v_lshl_add_u32 v8, v2, 4, v8""")
    for km in range(6):
        a("    buffer_load_dwordx4 v[%d:%d], v8, s[12:15], 0 offen offset:%d" % (64 + 4 * km, 67 + 4 * km, 384 + 64 * km))
    a("""    s_lshl_b32 s28, s21, 10           ; fragment z
    v_lshlrev_b32 v9, 4, v0
    s_branch L_prep_mm
L_prep_N:
    v_lshrrev_b32 v8, 1, v0
    v_mul_u32_u24 v8, 384, v8
    v_and_b32 v9, 1, v0
    v_lshl_add_u32 v8, v9, 4, v8
    s_lshl_b32 s28, s22, 5""")
    for j in range(6):
        a("    s_mov_b32 m0, %d" % (j * 1024))
        a("    s_add_u32 s34, s28, %d" % (j * 12288))
        a("    buffer_load_dwordx4 v8, s[16:19], s34 offen lds")
    a("""    v_lshlrev_b32 v8, 3, v2           ; 8 g
    v_lshrrev_b32 v9, 2, v0
    v_and_b32 v9, 3, v9
    v_add_u32 v8, v8, v9
    v_lshlrev_b32 v8, 5, v8           ; row*32
    v_and_b32 v10, 3, v0
    v_lshl_add_u32 v8, v10, 3, v8
    s_waitcnt vmcnt(0)""")
    for km in range(6):
        for q in range(2):
            a("    ds_read_b64_tr_b16 v[%d:%d], v8 offset:%d" % (64 + 4 * km + 2 * q, 65 + 4 * km + 2 * q, (32 * km + 4 * q) * 32))
    a("""    v_and_b32 v9, 3, v1
    v_mul_u32_u24 v9, 6144, v9
    v_lshlrev_b32 v10, 8, v2
    v_lshrrev_b32 v11, 2, v1
    v_lshlrev_b32 v11, 4, v11
    v_add3_u32 v9, v9, v10, v11
    s_lshr_b32 s28, s22, 2
    s_mul_i32 s28, s28, 24576
    s_and_b32 s33, s22, 3
    s_lshl_b32 s33, s33, 6
    s_add_u32 s28, s28, s33
    s_lshl_b32 s33, s23, 10
    s_add_u32 s28, s28, s33
    s_add_u32 s28, s28, 73728
    s_waitcnt lgkmcnt(0)
L_prep_mm:
    s_waitcnt vmcnt(0)""")
    for km in range(6):
        for t in range(2):
            d = 112 + 4 * t
            c = "0" if km == 0 else "v[%d:%d]" % (d, d + 3)
            a("    v_mfma_f32_16x16x32_bf16 v[%d:%d], v[%d:%d], v[%d:%d], %s" % (d, d + 3, 16 + 24 * t + 4 * km, 19 + 24 * t + 4 * km, 64 + 4 * km, 67 + 4 * km, c))
    a("    s_nop 15")
    for j in range(4):
        a("    v_cvt_pk_bf16_f32 v%d, v%d, v%d" % (128 + j, 112 + 2 * j, 113 + 2 * j))
    a("    buffer_store_dwordx4 v[128:131], v9, s[24:27], s28 offen")
    if stamp:
        a("    s_waitcnt vmcnt(0)")
        a("    s_memrealtime s[38:39]")
        a("    s_waitcnt lgkmcnt(0)")
        a("    s_add_u32 s24, s8, 0x180000\n    s_addc_u32 s25, s9, 0\n    s_mov_b32 s26, 4096")
        a("    v_mov_b32 v20, s36\n    v_mov_b32 v21, s37\n    v_mov_b32 v22, s38\n    v_mov_b32 v23, s39")
        a("    s_lshl_b32 s28, s2, 4\n    v_mov_b32 v24, s28")
        a("    s_mov_b64 exec, 1")
        a("    buffer_store_dwordx4 v[20:23], v24, s[24:27], 0 offen")
    a("L_prep_end:")
    a("    s_endpgm")
    return "\n".join(L) + "\n"

PREP_DESC = """.amdhsa_kernel swin_prep_kernel
  .amdhsa_next_free_vgpr 136
  .amdhsa_next_free_sgpr 40
  .amdhsa_accum_offset 136
  .amdhsa_group_segment_fixed_size 0
  .amdhsa_kernarg_size 48
  .amdhsa_user_sgpr_count 2
  .amdhsa_user_sgpr_kernarg_segment_ptr 1
  .amdhsa_system_sgpr_workgroup_id_x 1
.end_amdhsa_kernel
"""

vWB = [1, 2, 3]; vSTW = 4; vSTR = [5, 6]; vLD = 9; vSTO = 11
vMX = [12, 13, 14, 15]; vTM = [16, 17]; vSM = [20, 21, 22, 23]; vT2 = [24, 25]
def vS(kb, tb): return 32 + tb * 16 + kb * 4
def vP(tb, v): return 32 + tb * 8 + v * 4
def vACC(h, i): return 96 + h * 16 + i * 4
def vVB(cb, v): return 128 + cb * 8 + v * 4
def vYB(tb): return 208 + tb * 4
def vO(st, q): return (64, 80, 96, 112)[st] + q * 4
def vH(m, tb): return (224, 128, 160)[m] + tb * 8
def aXF(par, tb, s): return par * 96 + (tb * 6 + s) * 4
def aWR(k): return 192 + (k % 16) * 4
sX = 8; sOUT = 12; sLD = 24; sST = 32; sCNT = 48; sWAVE = 49; sKAP = 40; sOUTP = 16; sSTP = 52
STAGE0 = WIMG

class Cfg:
    ldflag = " nt"; stflag = " sc1"; wlead = 20; stamp = False; ld0 = 676; ldstep = 58.0
    R = 368; exit_tau = 672
    st0 = (1240, 750, 1010); ststep = (12, 16, 14)
    stage0 = True
    stg0 = 590; nosets = 4; oset0 = 0
    pf0 = True; pft = None
    hd_pre = 3; hd_lead = 88; hd_m = (0, 0, 0, 92, 104, 116); hd_n0 = 128; hd_nstep = 12; hd_x0 = 110; hd_xstep = 15

def stamp(a, idx, rt=False):
    a("    %s s[62:63]" % ("s_memrealtime" if rt else "s_memtime"))
    a("    s_waitcnt lgkmcnt(0)")
    a("    v_mov_b32 v26, s62\n    v_mov_b32 v27, s63\n    v_mov_b32 v28, s98")
    a("    s_mov_b64 exec, 1")
    a("    buffer_store_dwordx2 v[26:27], v28, s[68:71], 0 offen offset:%d" % (idx * 8))
    a("    s_mov_b64 exec, -1")

def mfma(d, a_kind, a, b_kind, b, first, tag=""):
    c = "0" if first else rtxt('v', d, 4)
    cr = [] if first else V(d, 4)
    return Op("v_mfma_f32_16x16x32_bf16 %s, %s, %s, %s" % (rtxt('v', d, 4), rtxt(a_kind, a, 4), rtxt(b_kind, b, 4), c),
              'mfma', reads=regs(a_kind, a, 4) + regs(b_kind, b, 4) + cr, writes=V(d, 4), creads=cr, tag=tag, passes=4)

def wread(k, **kw):
    off = (k % 144) * 1024
    base = vWB[off // 65536]
    return Op("ds_read_b128 %s, v%d offset:%d" % (rtxt('a', aWR(k), 4), base, off % 65536), 'dsr',
              reads=V(base), writes=A(aWR(k), 4), tag="W%d" % (k % 144), **kw)

def cvt(dst, s0, s1, **kw):
    return Op("v_cvt_pk_bf16_f32 v%d, v%d, v%d" % (dst, s0, s1), 'valu', reads=V(s0) + V(s1), writes=V(dst), **kw)

def xload(par, tb, s, cfg, **kw):
    d = aXF(par, tb, s)
    return Op("buffer_load_dwordx4 %s, v%d, s[%d:%d], s%d offen offset:%d%s" %
              (rtxt('a', d, 4), vLD, sX, sX + 3, sLD + 2 * tb, 64 * s, cfg.ldflag), 'vld',
              reads=V(vLD) + S(sX, 4) + S(sLD + 2 * tb), writes=A(d, 4), **kw)
XPAIRS = [(tb, m) for m in range(3) for tb in range(4)]

vSTW = 4; vSTR = [5, 6]; vLDC = 10
def aRAW(t, m, r): return 96 + ((m * 2 + t) * 4 + r) * 4
def xload_c(t, m, r, cfg):
    rho = 4 * t + r
    return Op("buffer_load_dwordx4 %s, v%d, s[%d:%d], s%d offen offset:%d%s" %
              (rtxt('a', aRAW(t, m, r), 4), vLDC, sX, sX + 3, sLD + rho, 128 * m, cfg.ldflag), 'vld',
              reads=V(vLDC) + S(sX, 4) + S(sLD + rho), writes=A(aRAW(t, m, r), 4))
def staging(t, m):
    o = []
    for r in range(4):
        o.append(Op("ds_write_b128 v%d, %s offset:%d" % (vSTW, rtxt('a', aRAW(t, m, r), 4), 1024 * r), 'dsw',
                    reads=V(vSTW) + A(aRAW(t, m, r), 4), writes=['STG']))
    for sp in range(2):
        for tp in range(2):
            d = aXF(0, 2 * t + tp, 2 * m + sp)
            o.append(Op("ds_read_b128 %s, v%d offset:%d" % (rtxt('a', d, 4), vSTR[sp], 2048 * tp), 'dsr',
                        reads=V(vSTR[sp]) + ['STG'], writes=A(d, 4)))
    return o

def vop(text, rd, wr, kind='valu'): return Op(text, kind, rd, wr)

def cross_reduce(o, r, opn, tmp, post):
    a_, b_, c_, d_ = r
    o.append(vop("v_permlane16_swap_b32 v%d, v%d" % (a_, b_), V(a_) + V(b_), V(a_) + V(b_), 'perm'))
    o.append(vop("v_permlane16_swap_b32 v%d, v%d" % (c_, d_), V(c_) + V(d_), V(c_) + V(d_), 'perm'))
    o.append(vop("%s v%d, v%d, v%d" % (opn, a_, a_, b_), V(a_) + V(b_), V(a_)))
    o.append(vop("%s v%d, v%d, v%d" % (opn, c_, c_, d_), V(c_) + V(d_), V(c_)))
    o.append(vop("v_permlane32_swap_b32 v%d, v%d" % (a_, c_), V(a_) + V(c_), V(a_) + V(c_), 'perm'))
    o.append(vop("%s v%d, v%d, v%d" % (opn, a_, a_, c_), V(a_) + V(c_), V(a_)))
    post(a_)
    o.append(vop("v_mov_b32 v%d, v%d" % (c_, a_), V(a_), V(c_)))
    o.append(vop("v_permlane32_swap_b32 v%d, v%d" % (a_, c_), V(a_) + V(c_), V(a_) + V(c_), 'perm'))
    o.append(vop("v_mov_b32 v%d, v%d" % (b_, a_), V(a_), V(b_)))
    o.append(vop("v_mov_b32 v%d, v%d" % (d_, c_), V(c_), V(d_)))
    o.append(vop("v_permlane16_swap_b32 v%d, v%d" % (a_, b_), V(a_) + V(b_), V(a_) + V(b_), 'perm'))
    o.append(vop("v_permlane16_swap_b32 v%d, v%d" % (c_, d_), V(c_) + V(d_), V(c_) + V(d_), 'perm'))

def softmax():
    o = []
    for tb in range(4):
        e = [vS(0, tb) + i for i in range(16)]; m = vMX[tb]
        o.append(vop("v_max3_f32 v%d, v%d, v%d, v%d" % (m, e[0], e[1], e[2]), V(e[0]) + V(e[1]) + V(e[2]), V(m)))
        for i in range(3, 15, 2):
            o.append(vop("v_max3_f32 v%d, v%d, v%d, v%d" % (m, m, e[i], e[i + 1]), V(m) + V(e[i]) + V(e[i + 1]), V(m)))
        o.append(vop("v_max_f32 v%d, v%d, v%d" % (m, m, e[15]), V(m) + V(e[15]), V(m)))
    cross_reduce(o, vMX, "v_max_f32", vTM, lambda z: o.append(vop("v_mul_f32 v%d, s%d, v%d" % (z, sKAP, z), V(z) + S(sKAP), V(z))))
    for tb in range(4):
        e = [vS(0, tb) + i for i in range(16)]; m = vMX[tb]; l = vSM[tb]
        for i in range(16):
            o.append(vop("v_fma_f32 v%d, v%d, s%d, -v%d" % (e[i], e[i], sKAP, m), V(e[i]) + V(m) + S(sKAP), V(e[i])))
            o.append(vop("v_exp_f32 v%d, v%d" % (e[i], e[i]), V(e[i]), V(e[i]), 'trans'))
            if i == 1: o.append(vop("v_add_f32 v%d, v%d, v%d" % (l, e[0], e[1]), V(e[0]) + V(e[1]), V(l)))
            elif i > 1: o.append(vop("v_add_f32 v%d, v%d, v%d" % (l, l, e[i]), V(l) + V(e[i]), V(l)))
    cross_reduce(o, vSM, "v_add_f32", vT2, lambda z: o.append(vop("v_rcp_f32 v%d, v%d" % (z, z), V(z), V(z), 'trans')))
    for tb in range(4):
        base = vS(0, tb); l = vSM[tb]
        for j in range(8):
            o.append(vop("v_mul_f32 v%d, v%d, v%d" % (base + 2 * j, base + 2 * j, l), V(base + 2 * j) + V(l), V(base + 2 * j)))
            o.append(vop("v_mul_f32 v%d, v%d, v%d" % (base + 2 * j + 1, base + 2 * j + 1, l), V(base + 2 * j + 1) + V(l), V(base + 2 * j + 1)))
            o.append(cvt(vP(tb, 0) + j, base + 2 * j, base + 2 * j + 1))
    return o

class Builder:
    def __init__(self, cfg, own, ldg, koff, toff, par):
        self.cfg = cfg; self.ops = []; self.nm = 0; self.pending = None
        self.own = own; self.ldg = ldg; self.koff = koff; self.toff = toff; self.par = par
        self.wuse = None; self.first = {}; self.last = {}; self.nw = 0
        ev = []
        for j in range(12):
            tau = int(cfg.ld0 + j * cfg.ldstep)
            if tau >= NM: ev.append((tau - NM, 1 - par, j, 1))
        ev.append((NM * 2, None, None, None))
        self.ev1 = ev
        self.ev2 = [(int(cfg.ld0 + j * cfg.ldstep), par, j, 2) for j in range(12) if int(cfg.ld0 + j * cfg.ldstep) < NM]
        self.bumped = False
    def T(self, tau): return max(0, (tau + self.toff)) * P
    def add(self, o, grp=None):
        o.grp = grp or self.own; self.ops.append(o); return o
    def pair(self, tau, par, j):
        tb, m = XPAIRS[j]
        for s in (2 * m, 2 * m + 1):
            self.add(xload(par, tb, s, self.cfg, earliest=self.T(tau), deadline=self.T(tau + 6)), self.ldg)
    def addm(self, o):
        cfg = self.cfg
        while self.ev1[0][0] <= self.nm:
            tau, par, j, _ = self.ev1.pop(0); self.pair(tau, par, j)
        if len(self.ev1) == 1 and not self.bumped:
            self.bumped = True
            for rho in range(0, 8, 2):
                self.add(Op("s_add_u32 s%d, s%d, %d" % (sLD + rho, sLD + rho, DELTA), 'salu', S(sLD + rho), S(sLD + rho) + ['scc']))
        while self.ev2 and self.ev2[0][0] <= self.nm:
            tau, par, j, _ = self.ev2.pop(0); self.pair(tau, par, j)
        if cfg.pft is not None and self.nm == cfg.pft and self.own != 'dry':
            self.add(Op("buffer_load_dword v8, v7, s[44:47], s43 offen", 'vld', reads=V(7) + S(44, 4) + S(43), writes=V(8), earliest=self.T(cfg.pft), deadline=self.T(cfg.pft + 6)), self.ldg)
        if self.wuse is not None:
            while self.nw < 144 and self.wuse[self.nw] - cfg.wlead <= self.nm:
                k = self.nw
                self.add(wread(self.koff + k, earliest=self.T(self.wuse[k] - cfg.wlead), deadline=self.T(self.wuse[k]) - 150)); self.nw += 1
        self.nm += 1; return self.add(o)
    def w_for(self, k):
        if k not in self.first: self.first[k] = self.nm
        self.last[k] = self.nm
    def run_pending(self):
        if self.pending is not None:
            p = self.pending; self.pending = None; p()
    def g3(self, u):
        for tb in range(4):
            for kb in range(4):
                self.addm(mfma(vS(kb, tb), 'a', aXF(self.par, kb, u), 'v', vYB(tb), first=(u == 0), tag="G3 u%d" % u))
        if u == 5:
            for o in softmax(): self.add(o)
    def g1(self, cb):
        hh = cb & 1
        for s in range(6):
            k = 6 * cb + s
            for tb in range(4):
                self.w_for(k)
                self.addm(mfma(vACC(hh, tb), 'a', aWR(k), 'a', aXF(self.par, tb, s), first=(s == 0), tag="G1 cb%d s%d" % (cb, s)))
            if s == 2: self.run_pending()
        for tb in range(4):
            for j in range(2):
                self.add(cvt(vYB(tb) + 2 * hh + j, vACC(hh, tb) + 2 * j, vACC(hh, tb) + 2 * j + 1))
        if hh == 1: self.pending = (lambda u=cb // 2: self.g3(u))
    def g2(self, cb):
        st = cb & 1
        for s in range(6):
            k = 72 + 6 * cb + s
            for kb in range(4):
                self.w_for(k)
                self.addm(mfma(vACC(st, kb), 'a', aXF(self.par, kb, s), 'a', aWR(k), first=(s == 0), tag="G2 cb%d s%d" % (cb, s)))
            if s == 2: self.run_pending()
        for v in range(2):
            for j in range(4):
                src = vACC(st, 2 * v + j // 2) + 2 * (j % 2)
                self.add(cvt(vVB(cb, v) + j, src, src + 1))
    def store(self, m, tb, r, tau, prev):
        cfg = self.cfg
        d = vH(m, tb) + 2 * r
        srd, row = (sOUTP, sSTP) if prev else (sOUT, sST)
        return Op("buffer_store_dwordx2 %s, v%d, s[%d:%d], s%d offen offset:%d%s" % (rtxt('v', d, 2), vSTO, srd, srd + 3, row + 2 * tb, r * 384 + m * 128, cfg.stflag), 'vst1',
                  reads=V(d, 2) + V(vSTO) + S(srd, 4) + S(row + 2 * tb), earliest=self.T(tau), deadline=self.T(tau + 6))
    def g4(self, m):
        cfg = self.cfg; j = 0
        for tb in range(4):
            st = (tb + cfg.oset0) % cfg.nosets
            for v in range(2):
                for q in range(4):
                    self.addm(mfma(vO(st, q), 'v', vP(tb, v), 'v', vVB(4 * m + q, v), first=(v == 0), tag="G4 m%d tb%d" % (m, tb)))
            for r in range(4):
                self.add(cvt(vH(m, tb) + 2 * r, vO(st, 0) + r, vO(st, 1) + r))
                self.add(cvt(vH(m, tb) + 2 * r + 1, vO(st, 2) + r, vO(st, 3) + r))
        for tb in range(4):
            for r in range(4):
                tau = int(cfg.st0[m] + j * cfg.ststep[m]); j += 1
                late = tau >= NM + cfg.R
                self.add(self.store(m, tb, r, tau, late and self.own == 'prev'), 'late' if late else None)
    def window(self):
        for cb in range(12): self.g1(cb)
        for cb in range(12): self.g2(cb)
        for m in range(3): self.g4(m)
        assert self.nm == NM and len(self.ev1) == 1 and not self.ev2, (self.nm, self.ev1, self.ev2)
        for rho in range(0, 8, 2):
            self.add(Op("s_mov_b32 s%d, s%d" % (sSTP + rho, sST + rho), 'salu', S(sST + rho), S(sSTP + rho)))
            self.add(Op("s_add_u32 s%d, s%d, %d" % (sST + rho, sST + rho, DELTA), 'salu', S(sST + rho), S(sST + rho) + ['scc'], earliest=self.T(NM)))
        self.add(Op("s_mov_b32 s%d, %d" % (sOUTP + 2, XBYTES), 'salu', [], S(sOUTP + 2)))
        return self.ops

def cut_at(ops, n):
    c = 0
    for i, o in enumerate(ops):
        if o.kind == 'mfma':
            if c == n: return i
            c += 1
    return len(ops)

def get_wuse(cfg):
    dry = Builder(cfg, 'cur', 'ld1', 0, -cfg.R, 0); dry.window()
    return dry, [dry.first[k] for k in range(144)]

def dma_blk(blk):
    ops = [Op("s_add_u32 s61, s60, %d" % (blk * 12288), 'salu', S(60), S(61) + ['scc']),
           Op("s_mov_b32 m0, s61", 'salu', S(61), ['m0'])]
    for j in range(3):
        ops.append(Op("buffer_load_dwordx4 v1, s[52:55], s61 offen offset:%d lds" % (j * 1024), 'dma',
                      V(1) + S(61) + ['m0', 'DORD'], ['DORD'] + ([('IMG', blk)] if j == 2 else [])))
    return ops

def head_lists(cfg):
    dry, wuse = get_wuse(cfg)
    if cfg.stage0: xl = [xload_c(t, m, r, cfg) for m in range(3) for t in range(2) for r in range(4)]
    else: xl = [xload(0, tb, s, cfg) for (tb, m) in XPAIRS for s in (2 * m, 2 * m + 1)]
    pre = dma_blk(0) + xl
    for rho in range(0, 8, 2):
        pre.append(Op("s_add_u32 s%d, s%d, %d" % (sLD + rho, sLD + rho, DELTA), 'salu', S(sLD + rho), S(sLD + rho) + ['scc']))
    for blk in range(1, cfg.hd_pre): pre += dma_blk(blk)
    B = Builder(cfg, 'next', 'ld2', 0, 0, 0); B.wuse = wuse
    early = [j for j in range(12) if int(cfg.ld0 + j * cfg.ldstep) < NM]
    w = B.window(); w = w[:cut_at(w, cfg.R)]
    ex = []
    for j in early:
        tb, m = XPAIRS[j]
        for s in (2 * m, 2 * m + 1):
            o = xload(1, tb, s, cfg); o.grp = 'ld2'; ex.append(o)
    w = ex + w
    ops = []
    if cfg.stage0:
        for m in range(3):
            for t in range(2): ops += staging(t, m)
    q = 0
    for blk in range(cfg.hd_pre, 12):
        tau = cfg.hd_m[blk] if blk < 6 else (cfg.hd_n0 + (blk - 6) * cfg.hd_nstep)
        for j in range(3):
            reg = (128 + 4 * q) if q < 20 else (224 + 4 * (q - 20)); q += 1
            off = blk * 12288 + j * 1024
            ld = Op("buffer_load_dwordx4 %s, v18, s[52:55], s61 offen offset:%d" % (rtxt('v', reg, 4), off % 4096), 'vld',
                    V(18) + S(52, 4) + S(61), V(reg, 4), deadline=max(0, tau - cfg.hd_lead + 4) * P)
            ld.lat = cfg.hd_lead * P
            so = Op("s_mov_b32 s61, %d" % (off - off % 4096), 'salu', [], S(61), deadline=ld.deadline - 8)
            va, o2 = (18, off) if blk < 6 else (19, off - 73728)
            wr = Op("ds_write_b128 v%d, %s offset:%d" % (va, rtxt('v', reg, 4), o2), 'dsw', V(va) + V(reg, 4) + ['IORD'], ['IORD'] + ([('IMG', blk)] if j == 2 else []),
                    deadline=(tau + 8) * P)
            so.emi = ld.emi = max(0, tau - cfg.hd_lead) + 2 * j; wr.emi = tau + 2 * j - 12
            ops += [so, ld, wr]
    i = 0
    for o in w:
        if o.grp == 'ld2':
            tau = int(cfg.hd_x0 + (i // 2) * 2 * cfg.hd_xstep); i += 1
            o.earliest = None; o.emi = tau; o.deadline = (tau + 6) * P
    bars = {}
    for blk in range(12):
        tb = max(0, wuse[12 * blk] - cfg.wlead - 4) * P
        bars[blk] = Op("s_barrier", 'bar', [('IMG', blk)], [('BAR', blk)], deadline=tb + 32)
        bars[blk].emi = tb // P
    seen = set()
    for o in w:
        if o.kind == 'dsr' and o.tag.startswith("W"):
            blk = int(o.tag[1:]) // 12
            if blk not in seen: seen.add(blk); ops.append(bars[blk])
            o.reads.append(('BAR', blk))
        ops.append(o)
    fin = [Op("s_barrier", 'bar', [('IMG', 11)], [])]
    return pre, ops, fin

def body(cfg, par):
    R = cfg.R
    dry, wuse = get_wuse(cfg)
    for k in range(144):
        prev_last = dry.last[k - 16] if k >= 16 else dry.last[k + 128] - NM
        assert prev_last < wuse[k] - cfg.wlead, (k, prev_last, wuse[k])
    def mk(*a):
        b = Builder(cfg, *a); b.wuse = wuse; return b.window()
    prv = mk('prev', 'ldx', 0, -R - NM, 1 - par)
    cur = mk('cur', 'ld1', 0, -R, par)
    nxt = mk('next', 'ld2', 144, NM - R, 1 - par)
    late = [o for o in prv if o.grp == 'late']
    for o in late: o.grp = 'prev'
    latecur = [o for o in cur if o.grp == 'late']
    body_ops = late + [o for o in cur[cut_at(cur, R):] if o.grp != 'late'] + nxt[:cut_at(nxt, R)]
    return body_ops, latecur

SCHED = dict(mfma_period=P, dsw_gap=56, vst1_gap=24, short=True)

def main_kernel(cfg):
    L = []
    a = L.append
    K = NAME + "_kernel"
    a(".globl %s\n.p2align 8\n.type %s,@function\n%s:" % (K, K, K))
    a("""    s_cmp_ge_u32 s2, 256
    s_cbranch_scc1 L_end
    s_load_dwordx2 s[4:5], s[0:1], 0
    s_load_dwordx2 s[6:7], s[0:1], 24
    s_load_dwordx2 s[50:51], s[0:1], 40
    v_lshrrev_b32 v16, 6, v0
    v_and_b32 v0, 63, v0
    s_nop 0
    v_readfirstlane_b32 s49, v16            ; wave
    v_lshlrev_b32 v1, 4, v0                 ; lane*16
    v_add_u32 v2, 0x10000, v1
    v_add_u32 v3, 0x20000, v1
    s_nop 1
    v_and_b32 v16, 15, v0                   ; i
    v_lshrrev_b32 v17, 3, v16
    v_mul_u32_u24 v17, 196608, v17          ; (i>>3)*row
    v_and_b32 v18, 7, v16
    v_mul_u32_u24 v18, 384, v18
    v_lshrrev_b32 v16, 4, v0                ; g
    v_lshlrev_b32 v16, 4, v16
    v_add3_u32 v9, v16, v17, v18
    s_lshl_b32 s52, s49, 12
    s_add_u32 s52, s52, 147456
    v_add_u32 v4, s52, v1
    v_and_b32 v16, 15, v0
    v_lshrrev_b32 v17, 4, v0
    v_and_b32 v18, 7, v16
    v_xor_b32 v18, v18, v17
    v_lshlrev_b32 v18, 4, v18
    v_lshl_add_u32 v18, v16, 7, v18
    v_add_u32 v5, s52, v18
    v_xor_b32 v6, 64, v5
    v_lshrrev_b32 v16, 3, v0
    v_and_b32 v17, 7, v0
    v_xor_b32 v17, v17, v16
    v_lshlrev_b32 v17, 4, v17
    v_mul_u32_u24 v16, 384, v16
    v_add_u32 v10, v16, v17
    v_lshrrev_b32 v16, 5, v0                ; g>>1
    v_mul_u32_u24 v16, 196608, v16
    v_lshrrev_b32 v17, 4, v0
    v_and_b32 v17, 1, v17
    v_mul_u32_u24 v17, 1536, v17
    v_and_b32 v18, 15, v0
    v_lshlrev_b32 v18, 3, v18
    v_add3_u32 v11, v16, v17, v18
    s_lshr_b32 s53, s2, 4
    s_mul_i32 s53, s53, 1572864
    s_and_b32 s54, s2, 15
    s_lshl_b32 s54, s54, 2
    s_add_u32 s54, s54, s49
    s_mul_i32 s54, s54, 3072
    s_add_u32 s53, s53, s54""")
    for rho in range(8):
        a("    s_add_u32 s%d, s53, %d" % (sLD + rho, rho * ROWB))
        a("    s_add_u32 s%d, s53, %d" % (sST + rho, rho * ROWB))
    a("    s_waitcnt lgkmcnt(0)")
    a("    s_mov_b32 s8, s4\n    s_mov_b32 s9, s5\n    s_mov_b32 s10, %d\n    s_mov_b32 s11, 0x00020000" % XBYTES)
    a("    s_mov_b32 s12, s6\n    s_mov_b32 s13, s7\n    s_mov_b32 s14, %d\n    s_mov_b32 s15, 0x00020000" % XBYTES)
    a("    s_mov_b32 s%d, %s" % (sKAP, f32hex(KAPPA)))
    a("    s_getpc_b64 s[44:45]")
    a("L_pc_ref:")
    a("    s_mov_b32 s46, L_code_end-L_pc_ref")
    a("    s_mov_b32 s47, 0x00020000")
    a("    v_lshlrev_b32 v7, 6, v0")
    a("    s_mov_b32 s43, L_tail-L_pc_ref")
    if cfg.pf0:
        a("    s_lshr_b32 s42, s2, 3\n    s_and_b32 s42, s42, 3\n    s_lshl_b32 s42, s42, 2\n    s_add_u32 s42, s42, s49\n    s_lshl_b32 s42, s42, 12")
        a("    buffer_load_dword v8, v7, s[44:47], s42 offen")
    if cfg.stamp:
        a("    s_add_u32 s68, s50, 0x100000\n    s_addc_u32 s69, s51, 0\n    s_mov_b32 s70, 0x200000\n    s_mov_b32 s71, 0x00020000")
        a("    s_lshl_b32 s98, s2, 2\n    s_add_u32 s98, s98, s49\n    s_lshl_b32 s98, s98, 7")
        stamp(a, 0); stamp(a, 8, True)
    a("    s_mov_b32 s52, s50\n    s_mov_b32 s53, s51\n    s_mov_b32 s54, %d\n    s_mov_b32 s55, 0x00020000" % WIMG)
    a("    s_mul_i32 s60, s49, 3072")
    a("    v_add_u32 v18, s60, v1")
    a("    v_add_u32 v19, 73728, v18")
    pre, hops, hfin = head_lists(cfg)
    horder, hstats = schedule(hops, **SCHED)
    brief = lambda st_: {k_: v for k_, v in st_.items() if k_ != 'late'}
    sys.stderr.write("head schedule: %s\n" % brief(hstats))
    post = [Op("s_mov_b32 s16, s12", 'salu', S(12), S(16)), Op("s_mov_b32 s17, s13", 'salu', S(13), S(17)),
            Op("s_mov_b32 s18, 0", 'salu', [], S(18)), Op("s_mov_b32 s19, 0x00020000", 'salu', [], S(19))]
    post += [Op("s_mov_b32 s%d, 0" % (sSTP + rho), 'salu', [], S(sSTP + rho)) for rho in range(0, 8, 2)]
    headseq = pre + horder + hfin + post
    parts = {}
    for par in range(2):
        ops, latecur = body(cfg, par)
        order, stats = schedule(ops, **SCHED)
        sys.stderr.write("schedule par%d: %s late=%s ops=%d\n" % (par, brief(stats), stats.get('late', [])[:4], len(ops)))
        cut = cut_at(order, cfg.exit_tau - cfg.R)
        parts[(par, 1)] = order[:cut]; parts[(par, 2)] = order[cut:]
        period = stats['end']
        if par == 1:
            after = set(id(o) for o in order[cut:])
            def clone(o):
                c = Op(o.text, o.kind, o.reads, o.writes, tag=o.tag, creads=o.creads, passes=o.passes); c.grp = o.grp
                return c
            tl = [clone(o) for o in ops if id(o) in after and o.grp in ('cur', 'prev') and o.kind != 'salu'] + [clone(o) for o in latecur]
            for o in tl:
                if o.kind == 'vst1': o.deadline = 0
            S2 = dict(SCHED); S2['vst1_gap'] = 12
            tailops, tstats = schedule(tl, **S2)
            sys.stderr.write("tail schedule: %s\n" % brief(tstats))
            for o in tailops: o.t = None
    tcut = parts[(0, 2)][0].t
    seq = [(0, 1), (0, 2), (1, 1), (1, 2), (0, 1), (0, 2), (1, 1)]
    def run(reqs, collect):
        s_ = State(); hl = finalize(headseq, s_, vm_slack=10**9); s_.time = 0
        out = {}
        tb = 0
        for n, key in enumerate(seq):
            c = [] if collect is not None else None
            ln = finalize(parts[key], s_, tbase=tb, reqs=(reqs.get(key) if reqs else None), collect=c)
            if collect is not None: collect.setdefault(key, []).append(c)
            out.setdefault(key, []).append(ln)
            s_.pos += 3 if key == (1, 1) else (1 if key == (1, 2) else 0)
            if key[1] == 2: tb += period + 20
        return s_, hl, out
    reqs = None
    for it in range(4):
        col = {}
        s_, head_lines, out = run(reqs, col)
        new_reqs = {}
        for key, lst in col.items():
            r = lst[0]
            for x in lst[1:]: r = merge_reqs(r, x)
            new_reqs[key] = r
        reqs = new_reqs
    s_, head_lines, out = run(reqs, None)
    for key, lst in out.items():
        assert all(x == lst[0] for x in lst), ("unstable", key)
    tail_lines = finalize(tailops, s_, merge_slack=10**9, vm_slack=10**9)
    if cfg.stamp:
        stamp(a, 1)
        import re as _re
        marks = [(r"s_barrier", 72), (r"v_mfma", 74), (r"G1 cb2 s0", 76), (r"G1 cb4 s0", 78), (r"G1 cb6 s0", 80), (r"G1 cb8 s0", 82), (r"G1 cb10 s0", 84)]
        hl = []; seen = set()
        for l in head_lines:
            for pat, sr in marks:
                if sr not in seen and _re.search(pat, l):
                    hl.append("    s_memtime s[%d:%d]" % (sr, sr + 1)); seen.add(sr)
            hl.append(l)
        head_lines = hl
    L += head_lines
    if cfg.stamp:
        a("    s_memtime s[86:87]")
        a("    s_waitcnt lgkmcnt(0)")
        a("    s_add_u32 s66, s98, 0x40000")
        a("    v_mov_b32 v28, s66")
        a("    s_mov_b64 exec, 1")
        for i in range(8):
            a("    v_mov_b32 v27, s%d" % (72 + 2 * i))
            a("    buffer_store_dword v27, v28, s[68:71], 0 offen offset:%d" % (4 * i))
        a("    s_mov_b64 exec, -1")
        stamp(a, 10)
    a("    s_mov_b32 s%d, 0" % sCNT)
    if cfg.stamp: stamp(a, 2)
    a("    .p2align 6")
    a("L_loop:")
    def itstamp(off):
        a("    s_memtime s[62:63]")
        a("    s_waitcnt lgkmcnt(0)")
        a("    v_mov_b32 v26, s62\n    v_mov_b32 v27, s63")
        a("    s_lshl_b32 s66, s48, 4")
        a("    s_add_u32 s66, s66, s98")
        a("    v_mov_b32 v28, s66")
        a("    s_mov_b64 exec, 1")
        a("    buffer_store_dwordx2 v[26:27], v28, s[68:71], 0 offen offset:%d" % off)
        a("    s_mov_b64 exec, -1")
    L += out[(0, 1)][0]
    L += out[(0, 2)][0]
    if cfg.stamp: itstamp(24)
    L += out[(1, 1)][0]
    a("    s_cmp_eq_u32 s%d, 1" % sCNT)
    a("    s_cbranch_scc1 L_tail")
    a("    s_add_u32 s%d, s%d, 1" % (sCNT, sCNT))
    L += out[(1, 2)][0]
    if cfg.stamp:
        a("    s_sub_u32 s48, s48, 1")
        itstamp(32)
        a("    s_add_u32 s48, s48, 1")
    a("    s_branch L_loop")
    a("L_tail:")
    if cfg.stamp: stamp(a, 6)
    L += tail_lines
    if cfg.stamp:
        a("    s_waitcnt vmcnt(0)")
        stamp(a, 7); stamp(a, 9, True)
    p1_lines = out[(0, 1)][0] + out[(0, 2)][0]; p2_lines = out[(1, 1)][0] + out[(1, 2)][0]
    a("L_end:")
    a("    s_endpgm")
    a("L_code_end:")
    allb = p1_lines + p2_lines
    nw = sum(1 for l in allb if 's_waitcnt' in l); nn = sum(1 for l in allb if 's_nop' in l)
    sys.stderr.write("body lines=%d waits=%d nops=%d head=%d tail=%d\n" % (len(allb), nw, nn, len(head_lines), len(tail_lines)))
    return "\n".join(L) + "\n"

MAIN_DESC = """.amdhsa_kernel %s_kernel
  .amdhsa_next_free_vgpr 512
  .amdhsa_next_free_sgpr 100
  .amdhsa_accum_offset 256
  .amdhsa_group_segment_fixed_size 0
  .amdhsa_kernarg_size 48
  .amdhsa_user_sgpr_count 2
  .amdhsa_user_sgpr_kernarg_segment_ptr 1
  .amdhsa_system_sgpr_workgroup_id_x 1
.end_amdhsa_kernel
""" % NAME

def generate(cfg):
    s = HEADER
    s += "; @launch kernel=swin_prep_kernel grid=(144,1,1) block=(64,1,1) lds=6144\n"
    s += "; @launch kernel=%s_kernel grid=(256,1,1) block=(256,1,1) lds=163840\n" % NAME
    s += '.amdgcn_target "amdgcn-amd-amdhsa--gfx950"\n.text\n'
    s += prep_kernel(cfg.stamp)
    s += main_kernel(cfg)
    s += '.section .rodata,"a"\n.p2align 6\n' + PREP_DESC + ".p2align 6\n" + MAIN_DESC
    return s

if __name__ == "__main__":
    ap = argparse.ArgumentParser()
    ap.add_argument("-o", default="/code/%s.s" % NAME)
    ap.add_argument("--stamp", action="store_true")
    ap.add_argument("--set", action="append", default=[])
    args = ap.parse_args()
    cfg = Cfg(); cfg.stamp = args.stamp
    for kv in args.set:
        k, v = kv.split("="); setattr(cfg, k, eval(v))
    open(args.o, "w").write(generate(cfg))
```

```python
import re

def regs(kind, base, n=1):
    return [(kind, base + i) for i in range(n)]
def V(b, n=1): return regs('v', b, n)
def A(b, n=1): return regs('a', b, n)
def S(b, n=1): return regs('s', b, n)

def rtxt(kind, base, n=1):
    if n == 1: return "%s%d" % (kind, base)
    return "%s[%d:%d]" % (kind, base, base + n - 1)

COST = dict(dsw2=8, label=0, bar=12, mfma=8, valu=4, trans=8, perm=4, dsr=4, dsw=20, vld=4, vst=20, vst1=12, salu=4, dma=20, wait=4, nop=4, br=4)
MEMK = ('dsr', 'dsw', 'dsw2', 'vld', 'vst', 'vst1', 'dma')
DSK = ('dsr', 'dsw', 'dsw2')
MEM_MFMA_GAP = 8

class Op:
    __slots__ = ("text", "kind", "reads", "writes", "cost", "idx", "preds", "succs", "alap", "asap", "pin",
                 "deadline", "earliest", "emitted", "t", "tag", "creads", "passes", "grp", "req", "lat", "emi")
    def __init__(self, text, kind, reads=(), writes=(), deadline=None, earliest=None, tag="", creads=(), passes=8):
        self.text = text; self.kind = kind
        self.reads = list(reads); self.writes = list(writes)
        self.creads = list(creads)
        self.cost = COST[kind]
        self.preds = []; self.succs = []
        self.deadline = deadline; self.earliest = earliest
        self.pin = None; self.emitted = False; self.t = None; self.tag = tag
        self.passes = passes
        self.grp = 'cur'; self.req = None; self.lat = None; self.emi = 0
    def __repr__(self): return self.text

def raw_latency(p, c):
    if p.lat is not None: return p.lat
    if p.kind == 'mfma':
        if c.kind == 'mfma' and set(c.creads) & set(p.writes) and not (set(c.reads) - set(c.creads)) & set(p.writes):
            return 0
        return p.passes * 4 + 40
    if p.kind == 'dsr': return 140
    if p.kind == 'vld': return 4000
    if p.kind == 'dma': return 1200 if c.kind == 'bar' else 4
    if p.kind == 'trans': return 12
    if p.kind in ('valu', 'perm'):
        if c.kind == 'mfma' or c.kind == 'perm': return 12
        return 4
    return 4

def build_dag(ops):
    last_w = {}; readers = {}
    for i, o in enumerate(ops):
        o.idx = i; o.preds = []; o.succs = []
    def edge(p, c, lat):
        if p is c: return
        c.preds.append((p, lat)); p.succs.append((c, lat))
    for o in ops:
        for r in o.reads:
            if r in last_w: edge(last_w[r], o, raw_latency(last_w[r], o))
        for r in o.writes:
            if r in last_w:
                p = last_w[r]
                lat = 4
                if p.kind == 'mfma' and o.kind != 'mfma': lat = p.passes * 4 + 40
                if p.kind == 'mfma' and o.kind == 'mfma': lat = 0 if r in o.creads else p.passes*4+16
                if p.kind in ('dsr', 'vld'): lat = raw_latency(p, o)
                edge(p, o, lat)
            for q in readers.get(r, []):
                lat = 4
                if q.kind == 'mfma': lat = 8
                if q.kind == 'vld' and False: lat = 4
                edge(q, o, lat)
        for r in o.reads:
            readers.setdefault(r, []).append(o)
        for r in o.writes:
            last_w[r] = o; readers[r] = []
    return ops

def schedule(ops, mfma_period=32, budget=24, verbose=False, horizon=None, merge_slack=220, mem_bias=400, urgent=300, dsw_gap=56, vst_gap=60, vst1_gap=28, lds_queue=40, slack=0, short=False):
    build_dag(ops)
    mf = [o for o in ops if o.kind == 'mfma']
    for i, o in enumerate(mf): o.pin = i * mfma_period
    end = len(mf) * mfma_period if horizon is None else horizon
    for o in reversed(ops):
        if o.kind == 'mfma':
            o.alap = o.pin; continue
        a = end + 10000
        for (c, lat) in o.succs:
            a = min(a, c.alap - max(lat, o.cost))
        if o.deadline is not None: a = min(a, o.deadline)
        o.alap = a
    out = []
    t = 0
    ready_t = {}
    npred = {id(o): len(o.preds) for o in ops}
    avail = [o for o in ops if not o.preds and o.kind != 'mfma']
    def rt(o):
        r = 0
        for (p, lat) in o.preds: r = max(r, p.t + lat)
        if o.earliest is not None: r = max(r, o.earliest)
        return r
    hs = State()
    pend = {}
    res = dict(dsw=-999, vst=-999, lds=0)
    def res_ok(o, tt):
        if o.kind == 'dsw' and tt < res['dsw'] + dsw_gap: return False
        if o.kind == 'vst' and tt < res['vst'] + vst_gap: return False
        if o.kind == 'vst1' and tt < res['vst'] + vst1_gap: return False
        if o.kind in DSK and res['lds'] - tt > lds_queue: return False
        return True
    def res_upd(o, tt):
        if o.kind == 'dsw': res['dsw'] = tt
        if o.kind in ('vst', 'vst1'): res['vst'] = tt
        if o.kind in DSK: res['lds'] = max(res['lds'], tt) + (16 if o.kind == 'dsr' else (24 if o.kind == 'dsw2' else 40))
    pendv = {}
    def extra(o):
        return 4 if any((r in pend or r in pendv) for r in o.reads + o.writes) else 0
    def emit(o, tt):
        o.t = tt; o.emitted = True; out.append(o)
        track(hs, o); res_upd(o, tt)
        hit = [pend[r] for r in o.reads + o.writes if r in pend]
        if hit:
            tmax = max(max(hit), tt - merge_slack)
            for r in [r for r, x in pend.items() if x <= tmax]: del pend[r]
        hit = [pendv[r] for r in o.reads + o.writes if r in pendv]
        if hit:
            tmax = max(max(hit), tt - 3000)
            for r in [r for r, x in pendv.items() if x <= tmax]: del pendv[r]
        if o.kind == 'dsr':
            for r in o.writes:
                if isinstance(r, tuple): pend[r] = tt
        if o.kind == 'vld':
            for r in o.writes: pendv[r] = tt
        for (c, lat) in o.succs:
            npred[id(c)] -= 1
            if npred[id(c)] == 0 and c.kind != 'mfma': avail.append(c)
    def force(o):
        nonlocal t
        need = []
        seen = set()
        def rec(x):
            for (p, lat) in x.preds:
                if not p.emitted and id(p) not in seen:
                    seen.add(id(p)); rec(p); need.append(p)
        rec(o)
        need.sort(key=lambda x: x.idx)
        for p in need:
            assert p.kind != 'mfma', ("backbone order violates deps", o.text, p.text)
            tt = max(t, rt(p)) if False else t
            if p in avail: avail.remove(p)
            tt = max(t, rt(p))
            emit(p, tt); t = tt + p.cost
            stats['forced'] += 1
    stats = dict(forced=0, stall=0)
    pipe_free = 0
    for mi, m in enumerate(mf):
        force(m)
        tt = max(t, pipe_free, rt(m))
        if tt > max(t, pipe_free): stats['stall'] += tt - max(t, pipe_free)
        if tt > pipe_free and mi > 0: stats.setdefault('late', []).append((mi, tt - pipe_free, m.tag))
        emit(m, tt)
        t = tt + m.cost
        pipe_free = tt + m.passes * 4
        nxt = mf[mi + 1] if mi + 1 < len(mf) else None
        limit = pipe_free + slack
        if nxt is not None and any((r in pend or r in pendv) for r in nxt.reads + nxt.writes): limit -= 4
        while True:
            ok = [o for o in avail if o.emi <= mi and rt(o) <= t and need_states(hs, o) <= 0 and res_ok(o, t)]
            if short:
                mem = [o for o in ok if o.kind in MEMK and t <= tt + m.cost + (4 if False else 0) and (limit == pipe_free + slack or o.cost > 4 or True)]
            else:
                mem = [o for o in ok if o.kind in MEMK and t + o.cost + (4 if o.kind in ('dsw', 'vst', 'dma') else MEM_MFMA_GAP) <= limit + (4 if o.kind in ('dsw', 'vst', 'dma') and t == tt + m.cost else 0)]
            oth = [o for o in ok if o.kind not in MEMK and t + o.cost + extra(o) <= limit]
            mem.sort(key=lambda o: (o.alap, o.idx)); oth.sort(key=lambda o: (o.alap, o.idx))
            pick = None
            if mem and (not oth or mem[0].alap <= oth[0].alap + mem_bias or mem[0].alap <= t + urgent): pick = mem[0]
            elif oth: pick = oth[0]
            elif mem: pick = mem[0]
            if pick is None: break
            avail.remove(pick)
            c = extra(pick)
            emit(pick, t + c); t += pick.cost + c
            if nxt is not None and limit == pipe_free + slack and any((r in pend or r in pendv) for r in nxt.reads + nxt.writes): limit -= 4
    while avail:
        avail.sort(key=lambda o: (o.alap, o.idx))
        o = avail.pop(0)
        tt = max(t, rt(o)); emit(o, tt); t = tt + o.cost
    assert all(o.emitted for o in ops), [o.text for o in ops if not o.emitted][:5]
    stats['end'] = t; stats['pipe_end'] = pipe_free
    return out, stats

VALU_KINDS = ('valu', 'trans', 'perm')

class State:
    def __init__(self):
        self.pos = 0
        self.lastw = {}
        self.cread = {}
        self.lgkm = []
        self.vm = []
        self.pend = {}
        self.time = 0
        self.seq = 0
        self.mfree = -100
        self.moff = 0

MFMA_STATES = 7
def need_states(st, o):
    return _need_states(st, o)

def mpos_of(st, o):
    m = st.pos + st.moff
    if o.kind == 'mfma': m = max(m, st.mfree)
    return m

def advance_mfma(st, o):
    if o.kind == 'mfma':
        m = mpos_of(st, o); st.moff = m - st.pos; st.mfree = m + (o.passes - 1)

def _need_states(st, o):
    need = 0
    def req(r, n, table=None):
        nonlocal need
        e = (table or st.lastw).get(r)
        return e
    for r in o.reads:
        e = st.lastw.get(r)
        if e is None: continue
        pos, p, mp = e
        dist = (mpos_of(st, o) - mp - 1) if p.kind == 'mfma' else (st.pos - pos - 1)
        n = 0
        if p.kind == 'mfma':
            if o.kind == 'mfma':
                if r in o.creads and not (r in [x for x in o.reads if x not in o.creads]):
                    same = (p.writes == o.creads)
                    n = 0 if same else p.passes + 2
                else:
                    n = p.passes + 4
            else:
                n = p.passes + 4
        elif p.kind in VALU_KINDS:
            if r[0] in ('v', 'a'):
                if o.kind == 'mfma': n = 2
                elif o.kind == 'perm': n = 2
                elif p.kind == 'trans' and o.kind != 'trans': n = 1
                elif p.kind == 'trans': n = 1
                if 'readlane' in o.text or 'readfirstlane' in o.text: n = max(n, 1)
                if 'dpp' in o.text or 'quad_perm' in o.text or 'row_' in o.text: n = max(n, 2)
            else:
                if o.kind in ('vld', 'vst', 'vst1', 'dma'): n = 5
                elif o.kind in VALU_KINDS: n = 2
                else: n = 2
        elif p.kind == 'salu':
            if r == 'm0' and o.kind in ('dma',): n = 1
        need = max(need, n - dist)
    for r in o.writes:
        e = st.lastw.get(r)
        if e is not None:
            pos, p, mp = e
            dist = (mpos_of(st, o) - mp - 1) if p.kind == 'mfma' else (st.pos - pos - 1)
            if p.kind == 'mfma' and not (o.kind == 'mfma' and r in o.creads and p.writes == o.creads):
                if o.kind == 'mfma':
                    n = p.passes + 2
                else:
                    n = p.passes + 4
                need = max(need, n - dist)
        e = st.cread.get(r)
        if e is not None and o.kind != 'mfma':
            pos, p, mp = e
            dist = mpos_of(st, o) - mp - 1
            need = max(need, (p.passes - 1) - dist)
        e = st.lastw.get(('stdata', r))
        if e is not None:
            pos, p, mp = e
            dist = st.pos - pos - 1
            need = max(need, 2 - dist)
    return need

def track(st, o):
    advance_mfma(st, o)
    mp = st.pos + st.moff
    for r in o.writes:
        if o.kind in ('dsr', 'vld'): st.lastw.pop(r, None)
        else: st.lastw[r] = (st.pos, o, mp)
        st.cread.pop(r, None)
    if o.kind == 'mfma':
        for r in o.creads: st.cread[r] = (st.pos, o, mp)
    st.pos += 1

def finalize(seq, st=None, tbase=0, merge_slack=220, vm_slack=3000, reqs=None, collect=None, exact=False):
    if st is None: st = State()
    lines = []
    def younger(q, sq):
        for k, e_ in enumerate(q):
            if e_[0] == sq: return len(q) - 1 - k
        return None
    for i, o in enumerate(seq):
        if o.t is not None: st.time = (tbase + o.t) if exact else max(st.time, tbase + o.t)
        needl = None; needv = None
        for r in list(o.reads) + list(o.writes):
            e = st.pend.get(r)
            if e is None: continue
            cnt, sq = e
            k = younger(st.lgkm if cnt == 'lgkm' else st.vm, sq)
            if k is None: continue
            if cnt == 'lgkm': needl = k if needl is None else min(needl, k)
            else: needv = k if needv is None else min(needv, k)
        if needl is not None:
            q = st.lgkm; k = needl
            while k > 0:
                cand = q[len(q) - k]
                if cand[1] + merge_slack <= st.time: k -= 1
                else: break
            needl = min(k, 15)
        if needv is not None:
            q = st.vm; k = needv
            while k > 0:
                cand = q[len(q) - k]
                if cand[2] == 'vld' and cand[1] + vm_slack <= st.time: k -= 1
                else: break
            needv = min(k, 63)
        rn = 0
        if reqs is not None:
            rv, rl, rn = reqs[i]
            if rv is not None: needv = rv if needv is None else min(needv, rv)
            if rl is not None: needl = rl if needl is None else min(needl, rl)
        if needl is not None or needv is not None:
            parts = []
            if needv is not None:
                parts.append("vmcnt(%d)" % needv)
                st.vm = st.vm[max(0, len(st.vm) - needv):] if needv > 0 else []
            if needl is not None:
                parts.append("lgkmcnt(%d)" % needl)
                st.lgkm = st.lgkm[max(0, len(st.lgkm) - needl):] if needl > 0 else []
            lines.append("    s_waitcnt " + " ".join(parts))
            st.pos += 1; st.time += 0 if exact else 4
        k = max(need_states(st, o), rn - (1 if (needl is not None or needv is not None) else 0) * 0)
        if collect is not None: collect.append((needv, needl, k))
        while k > 0:
            m = min(k, 16)
            lines.append("    s_nop %d" % (m - 1))
            st.pos += m; st.time += 4 * m; k -= m
        if o.kind == 'label':
            lines.append(o.text); continue
        lines.append("    " + o.text + (("    ; " + o.tag) if o.tag else ""))
        st.seq += 1
        advance_mfma(st, o)
        mp = st.pos + st.moff
        for r in o.writes:
            st.pend.pop(r, None)
            if (o.kind in ('dsr', 'vld', 'dma') and isinstance(r, tuple)) or (o.kind == 'dsw' and isinstance(r, tuple) and r[0] == 'IMG'):
                st.pend[r] = ('lgkm' if o.kind in ('dsr', 'dsw') else 'vm', st.seq)
                st.lastw.pop(r, None)
            else:
                st.lastw[r] = (st.pos, o, mp)
            st.cread.pop(r, None)
        if o.kind == 'mfma':
            for r in o.creads: st.cread[r] = (st.pos, o, mp)
        if o.kind == 'vst' and ('dwordx4' in o.text or 'dwordx3' in o.text):
            for r in o.reads: st.lastw[('stdata', r)] = (st.pos, o, mp)
        if o.kind in DSK: st.lgkm.append((st.seq, st.time))
        if o.kind in ('vld', 'vst', 'vst1', 'dma'):
            st.vm.append((st.seq, st.time, o.kind)); st.maxvm = max(getattr(st, 'maxvm', 0), len(st.vm))
        if o.kind in DSK: st.maxlg = max(getattr(st, 'maxlg', 0), len(st.lgkm))
        if o.text.startswith("s_waitcnt"):
            m = re.search(r"vmcnt\((\d+)\)", o.text)
            if m:
                k = int(m.group(1)); st.vm = st.vm[max(0, len(st.vm) - k):] if k > 0 else []
            m = re.search(r"lgkmcnt\((\d+)\)", o.text)
            if m:
                k = int(m.group(1)); st.lgkm = st.lgkm[max(0, len(st.lgkm) - k):] if k > 0 else []
        n = 1
        m = re.match(r"s_nop (\d+)", o.text)
        if m: n = int(m.group(1)) + 1
        st.pos += n; st.time += o.cost
    return lines

def merge_reqs(a, b):
    out = []
    for (v1, l1, n1), (v2, l2, n2) in zip(a, b):
        mn = lambda x, y: x if y is None else (y if x is None else min(x, y))
        out.append((mn(v1, v2), mn(l1, l2), max(n1, n2)))
    return out
```

```python
import sys, struct, math, argparse
sys.path.insert(0, "gen"); sys.path.insert(0, "gen")
from sched import *

NAME = "standalone__swin_window_attn__vision"
DELTA = 25165824
XBYTES = 100663296
ROWB = 196608
WIMG = 147456
KAPPA = (192 ** -0.5) * math.log2(math.e)
NM = 768
P = 16
def f32hex(x): return "0x%08x" % struct.unpack("<I", struct.pack("<f", x))[0]

HEADER = """; Kernarg layout for this problem (48 bytes, ptrs only, base s[0:1]):
"""

vWB = [1, 2, 3]; vSTO = 11
vMX = [12, 13, 14, 15]; vSM = [20, 21, 22, 23]; vTMP = 16
def vS(kb, tb): return 32 + tb * 16 + kb * 4
def vP(tb, v): return 32 + tb * 8 + v * 4
def vACC(h, i): return 96 + h * 16 + i * 4
def vVB(cb, v): return 128 + cb * 8 + v * 4
def vYB(tb, u=1): return (208 if u & 1 else YB0) + tb * 4
YB0 = 208
def vH(m, tb): return (224, 128, 160)[m] + tb * 8
def aXF(par, tb, s): return par * 96 + (tb * 6 + s) * 4
def aWR(q): return 192 + (q % 16) * 4
sX = 8; sOUT = 12; sLD = 24; sKAP = 40
def sST(par): return 32 + par
sWIN = 16

class Cfg:
    ldflag = " nt"; stflag = " sc1"; wflag = ""; wlead = 26; stamp = False
    ldt = (676, 721, 766, 811, 856, 901, 946, 991, 1180, 1225, 1270, 1315); ldlat = 150; stgd = 24
    stt = ((9, 760, 27), (22, 1003, 8), (5, 1190, 30), (12, 1335, 9)); stm = (1, 2, 0)
    stt_2 = ((48, 750, 8),); amap = 1
    stg = (70, 115, 160, 205, 250, 295, 340, 378, 716, 730, 744, 758)
    hd_x0 = 170; hd_xstep = 25; hd_stg = (320, 345, 370, 690, 700, 710, 720, 730, 740, 750, 760, 770)
    n0 = 24; nstep = 6; nlat = 80
    g3c = 1; fold = 1; frag = 0; chain = 1; wsp = 2; wdl = 6; probe = None; ab = (); split = 1; pft = 620
    fm = (10, 60); f1 = (30, 80, 130); pace = 3; polls = 200; pollflag = " nt"; psleep = 2; x0pre = 0; m0first = 0; quiet = 0

def stamp(a, idx, rt=False):
    a("    %s s[62:63]" % ("s_memrealtime" if rt else "s_memtime"))
    a("    s_waitcnt lgkmcnt(0)")
    a("    v_mov_b32 v26, s62\n    v_mov_b32 v27, s63\n    v_mov_b32 v28, s98")
    a("    s_mov_b64 exec, 1")
    a("    buffer_store_dwordx2 v[26:27], v28, s[68:71], 0 offen offset:%d" % (idx * 8))
    a("    s_mov_b64 exec, -1")

def mfma(d, a_kind, a, b_kind, b, first, tag=""):
    c = "0" if first else rtxt('v', d, 4)
    cr = [] if first else V(d, 4)
    return Op("v_mfma_f32_16x16x32_bf16 %s, %s, %s, %s" % (rtxt('v', d, 4), rtxt(a_kind, a, 4), rtxt(b_kind, b, 4), c),
              'mfma', reads=regs(a_kind, a, 4) + regs(b_kind, b, 4) + cr, writes=V(d, 4), creads=cr, tag=tag, passes=4)

def wread(q, k, **kw):
    off = k * 1024
    base = vWB[off // 65536]
    return Op("ds_read_b128 %s, v%d offset:%d" % (rtxt('a', aWR(q), 4), base, off % 65536), 'dsr',
              reads=V(base), writes=A(aWR(q), 4), tag="W%d" % k, **kw)

def cvt(dst, s0, s1, **kw):
    return Op("v_cvt_pk_bf16_f32 v%d, v%d, v%d" % (dst, s0, s1), 'valu', reads=V(s0) + V(s1), writes=V(dst), **kw)

XPAIRS = [(tb, m) for tb in range(4) for m in range(3)]
vLDE = [9, 10]; vSTW = 4; vSTR = [5, 6]
def xload(par, j, e, cfg, **kw):
    tb, m = XPAIRS[j]; d = aXF(par, tb, 2 * m + e)
    o = Op("buffer_load_dwordx4 %s, v%d, s[%d:%d], s%d offen offset:%d%s" %
           (rtxt('a', d, 4), vLDE[e], sX, sX + 3, sLD + 2 * tb, 128 * m, cfg.ldflag), 'vld',
           reads=V(vLDE[e]) + S(sX, 4) + S(sLD + 2 * tb), writes=A(d, 4), **kw)
    o.lat = cfg.ldlat * P
    return o
def xload_f(par, j, e, cfg):
    tb, m = XPAIRS[j]; d = aXF(par, tb, 2 * m + e)
    return Op("buffer_load_dwordx4 %s, v31, s[%d:%d], s%d offen offset:%d%s" % (rtxt('a', d, 4), sX, sX + 3, sLD + 2 * tb, 128 * m + 64 * e, cfg.ldflag), 'vld',
              reads=V(31) + S(sX, 4) + S(sLD + 2 * tb), writes=A(d, 4))
def staging(par, j, **kw):
    tb, m = XPAIRS[j]; o = []
    for e in range(2):
        for h in range(2):
            d = aXF(par, tb, 2 * m + e) + 2 * h
            o.append(Op("ds_write_b64 v%d, %s offset:%d" % (vSTW, rtxt('a', d, 2), 1024 * h + 512 * e), 'dsw2',
                        reads=V(vSTW) + A(d, 2), writes=[('STG', e, h)] and ['STG%d%d' % (e, h)], **kw))
    for sp in range(2):
        d = aXF(par, tb, 2 * m + sp)
        o.append(Op("ds_read2_b64 %s, v%d offset0:0 offset1:128" % (rtxt('a', d, 4), vSTR[sp]), 'dsr',
                    reads=V(vSTR[sp]) + ['STG00', 'STG01', 'STG10', 'STG11'], writes=A(d, 4), **kw))
    return o

def vop(text, rd, wr, kind='valu'): return Op(text, kind, rd, wr)

def cross_reduce(o, r, opn, tmp, post):
    a_, b_, c_, d_ = r
    o.append(vop("v_permlane16_swap_b32 v%d, v%d" % (a_, b_), V(a_) + V(b_), V(a_) + V(b_), 'perm'))
    o.append(vop("v_permlane16_swap_b32 v%d, v%d" % (c_, d_), V(c_) + V(d_), V(c_) + V(d_), 'perm'))
    o.append(vop("%s v%d, v%d, v%d" % (opn, a_, a_, b_), V(a_) + V(b_), V(a_)))
    o.append(vop("%s v%d, v%d, v%d" % (opn, c_, c_, d_), V(c_) + V(d_), V(c_)))
    o.append(vop("v_permlane32_swap_b32 v%d, v%d" % (a_, c_), V(a_) + V(c_), V(a_) + V(c_), 'perm'))
    o.append(vop("%s v%d, v%d, v%d" % (opn, a_, a_, c_), V(a_) + V(c_), V(a_)))
    post(a_)
    o.append(vop("v_mov_b32 v%d, v%d" % (c_, a_), V(a_), V(c_)))
    o.append(vop("v_permlane32_swap_b32 v%d, v%d" % (a_, c_), V(a_) + V(c_), V(a_) + V(c_), 'perm'))
    o.append(vop("v_mov_b32 v%d, v%d" % (b_, a_), V(a_), V(b_)))
    o.append(vop("v_mov_b32 v%d, v%d" % (d_, c_), V(c_), V(d_)))
    o.append(vop("v_permlane16_swap_b32 v%d, v%d" % (a_, b_), V(a_) + V(b_), V(a_) + V(b_), 'perm'))
    o.append(vop("v_permlane16_swap_b32 v%d, v%d" % (c_, d_), V(c_) + V(d_), V(c_) + V(d_), 'perm'))

def cross_reduce2(o, r, opn, post):
    a_, b_ = r
    o.append(vop("v_permlane16_swap_b32 v%d, v%d" % (a_, b_), V(a_) + V(b_), V(a_) + V(b_), 'perm'))
    o.append(vop("%s v%d, v%d, v%d" % (opn, a_, a_, b_), V(a_) + V(b_), V(a_)))
    o.append(vop("v_mov_b32 v%d, v%d" % (b_, a_), V(a_), V(b_)))
    o.append(vop("v_permlane32_swap_b32 v%d, v%d" % (a_, b_), V(a_) + V(b_), V(a_) + V(b_), 'perm'))
    o.append(vop("%s v%d, v%d, v%d" % (opn, a_, a_, b_), V(a_) + V(b_), V(a_)))
    post(a_)
    o.append(vop("v_mov_b32 v%d, v%d" % (b_, a_), V(a_), V(b_)))
    o.append(vop("v_permlane16_swap_b32 v%d, v%d" % (a_, b_), V(a_) + V(b_), V(a_) + V(b_), 'perm'))

def softmax(tbs, fold=False):
    o = []
    def red(regs, opn, post):
        if len(tbs) == 4: cross_reduce(o, regs, opn, None, post)
        else: cross_reduce2(o, [regs[t] for t in tbs], opn, post)
    for tb in tbs:
        e = [vS(0, tb) + i for i in range(16)]; m = vMX[tb]
        o.append(vop("v_max3_f32 v%d, v%d, v%d, v%d" % (m, e[0], e[1], e[2]), V(e[0]) + V(e[1]) + V(e[2]), V(m)))
        for i in range(3, 15, 2):
            o.append(vop("v_max3_f32 v%d, v%d, v%d, v%d" % (m, m, e[i], e[i + 1]), V(m) + V(e[i]) + V(e[i + 1]), V(m)))
        o.append(vop("v_max_f32 v%d, v%d, v%d" % (m, m, e[15]), V(m) + V(e[15]), V(m)))
    red(vMX, "v_max_f32", (lambda z: None) if fold else (lambda z: o.append(vop("v_mul_f32 v%d, s%d, v%d" % (z, sKAP, z), V(z) + S(sKAP), V(z)))))
    for tb in tbs:
        e = [vS(0, tb) + i for i in range(16)]; m = vMX[tb]; l = vSM[tb]
        for i in range(16):
            if fold: o.append(vop("v_sub_f32 v%d, v%d, v%d" % (e[i], e[i], m), V(e[i]) + V(m), V(e[i])))
            else: o.append(vop("v_fma_f32 v%d, v%d, s%d, -v%d" % (e[i], e[i], sKAP, m), V(e[i]) + V(m) + S(sKAP), V(e[i])))
            o.append(vop("v_exp_f32 v%d, v%d" % (e[i], e[i]), V(e[i]), V(e[i]), 'trans'))
            if i == 1: o.append(vop("v_add_f32 v%d, v%d, v%d" % (l, e[0], e[1]), V(e[0]) + V(e[1]), V(l)))
            elif i > 1: o.append(vop("v_add_f32 v%d, v%d, v%d" % (l, l, e[i]), V(l) + V(e[i]), V(l)))
    red(vSM, "v_add_f32", lambda z: o.append(vop("v_rcp_f32 v%d, v%d" % (z, z), V(z), V(z), 'trans')))
    for tb in tbs:
        base = vS(0, tb); l = vSM[tb]
        for j in range(8):
            o.append(vop("v_mul_f32 v%d, v%d, v%d" % (base + 2 * j, base + 2 * j, l), V(base + 2 * j) + V(l), V(base + 2 * j)))
            o.append(vop("v_mul_f32 v%d, v%d, v%d" % (base + 2 * j + 1, base + 2 * j + 1, l), V(base + 2 * j + 1) + V(l), V(base + 2 * j + 1)))
            o.append(cvt(vP(tb, 0) + j, base + 2 * j, base + 2 * j + 1))
    return o

FLAG = WIMG + 4 * 2048
vFA = 29; vFL = 30; sFL = 41; vMK = [26, 27, 28]; sXC = 48; NPROD = 24; vNW = 24; vNB = 25
NTASK = 72
PUBB = (1, 2, 3, 4, 5)

def at(o, idx, slack=6):
    o.emi = max(0, idx); o.deadline = max(0, idx + slack) * P; return o

class Builder:
    def __init__(self, cfg, wuse=None):
        self.cfg = cfg; self.ops = []; self.nm = 0; self.pending = None
        self.wuse = wuse; self.wseq = []; self.wfirst = []; self.wlast = []; self.nw = 0
        self.ev = []; self.seen = set(); self.marks = {}
    def add(self, o): self.ops.append(o); return o
    def event(self, idx, fn): self.ev.append((idx, len(self.ev), fn)); self.ev.sort(key=lambda e: e[:2])
    def check(self, key, mask, idx, after):
        cfg = self.cfg
        rd = Op("ds_read_b32 v%d, v%d" % (vFL, vFA), 'dsr', V(vFA) + after, V(vFL), deadline=max(0, idx * P - 200)); rd.emi = max(0, idx - 12)
        rf = Op("v_readfirstlane_b32 s%d, v%d" % (sFL, vFL), 'valu', V(vFL), S(sFL), deadline=idx * P)
        if mask & (mask - 1) == 0:
            br = Op("s_bitcmp1_b32 s%d, %d\n    s_cbranch_scc0 L_slow%d\nL_ok%d:" % (sFL, mask.bit_length() - 1, key, key), 'salu', S(sFL), [('BAR', key)], deadline=idx * P + 16)
        else:
            br = Op("s_andn2_b32 s%d, %d, s%d\n    s_cbranch_scc1 L_slow%d\nL_ok%d:" % (sFL, mask, sFL, key, key), 'salu', S(sFL), [('BAR', key)] + S(sFL), deadline=idx * P + 16)
        br.cost = 8
        for o in (rd, rf, br): self.add(o)
    def addm(self, o):
        cfg = self.cfg
        while self.ev and self.ev[0][0] <= self.nm: self.ev.pop(0)[2]()
        if self.wuse is not None:
            while self.nw < len(self.wuse) and self.wuse[self.nw][2] <= self.nm:
                q = self.nw; k, first, emi = self.wuse[q]
                r = wread(q, k, deadline=min(first * P - 150, (emi + cfg.wdl) * P)); r.emi = max(0, emi)
                if first < NM:
                    key = min(k // 12, 6)
                    if key not in self.seen:
                        self.seen.add(key)
                        self.check(key, (1 << key) if key < 6 else 0x3c0, max(0, emi - 2),
                                   [('FS', j) for j in range(5) if key >= PUBB[j]] + ([('FS', 5)] if key == 6 else []))
                    r.reads.append(('BAR', key))
                if self.nm == 0 and q < 8: r.writes.append('W0G%d' % q); o.reads.append('W0G%d' % q)
                self.add(r); self.nw += 1
        self.nm += 1; return self.add(o)
    def w_new(self, k):
        self.wseq.append(k); self.wfirst.append(self.nm); self.wlast.append(self.nm); return len(self.wseq) - 1
    def run_pending(self):
        if self.pending is not None:
            p = self.pending; self.pending = None; p()
    def g3(self, u, tbs):
        for tb in tbs:
            for kb in range(4):
                for uu in ((u - 1, u) if self.cfg.g3c else (u,)):
                    self.addm(mfma(vS(kb, tb), 'a', aXF(self.par, kb, uu), 'v', vYB(tb, uu), first=(uu == 0), tag="G3 u%d" % uu))
        if u == 5:
            for o in softmax(tbs, self.cfg.fold): self.add(o)
    def g1(self, cb, tbs):
        hh = cb & 1
        if self.cfg.chain:
            qs = {}
            for i, tb in enumerate(tbs):
                for s in range(6):
                    if s not in qs: qs[s] = self.w_new(6 * cb + s)
                    self.wlast[qs[s]] = self.nm
                    self.addm(mfma(vACC(hh, tb), 'a', aWR(qs[s]), 'a', aXF(self.par, tb, s), first=(s == 0), tag="G1 cb%d s%d" % (cb, s)))
                if i == 1: self.run_pending()
        else:
          for s in range(6):
            q = self.w_new(6 * cb + s)
            for tb in tbs:
                self.wlast[q] = self.nm
                self.addm(mfma(vACC(hh, tb), 'a', aWR(q), 'a', aXF(self.par, tb, s), first=(s == 0), tag="G1 cb%d s%d" % (cb, s)))
            if s == (2 if len(tbs) == 4 else 4): self.run_pending()
        for tb in tbs:
            for j in range(2):
                self.add(cvt(vYB(tb, cb // 2) + 2 * hh + j, vACC(hh, tb) + 2 * j, vACC(hh, tb) + 2 * j + 1))
        if hh == 1 and (not self.cfg.g3c or cb % 4 == 3): self.pending = (lambda u=cb // 2: self.g3(u, tbs))
    def g2(self, cb):
        st = cb & 1
        if self.cfg.chain:
            qs = {}
            for kb in range(4):
                for s in range(6):
                    if s not in qs: qs[s] = self.w_new(72 + 6 * cb + s)
                    self.wlast[qs[s]] = self.nm
                    self.addm(mfma(vACC(st, kb), 'a', aXF(self.par, kb, s), 'a', aWR(qs[s]), first=(s == 0), tag="G2 cb%d s%d" % (cb, s)))
                if kb == 1: self.run_pending()
        else:
          for s in range(6):
            q = self.w_new(72 + 6 * cb + s)
            for kb in range(4):
                self.wlast[q] = self.nm
                self.addm(mfma(vACC(st, kb), 'a', aXF(self.par, kb, s), 'a', aWR(q), first=(s == 0), tag="G2 cb%d s%d" % (cb, s)))
            if s == 2: self.run_pending()
        for v in range(2):
            for j in range(4):
                src = vACC(st, 2 * v + j // 2) + 2 * (j % 2)
                self.add(cvt(vVB(cb, v) + j, src, src + 1))
    def g4(self, m, tbs, sets):
        cfg = self.cfg; n = self.n
        for tb, ob in zip(tbs, sets):
            for v, q in ([(v, q) for q in range(4) for v in range(2)] if cfg.chain else [(v, q) for v in range(2) for q in range(4)]):
                    self.addm(mfma(ob + 4 * q, 'v', vP(tb, v), 'v', vVB(4 * m + q, v), first=(v == 0), tag="G4 m%d tb%d" % (m, tb)))
            for r in range(4):
                self.add(cvt(vH(m, tb) + 2 * r, ob + r, ob + 4 + r))
                self.add(cvt(vH(m, tb) + 2 * r + 1, ob + 8 + r, ob + 12 + r))
        stt = [t0 + i * dt for (c, t0, dt) in (cfg.stt_2 if n == 2 else cfg.stt) for i in range(c)]
        assert len(stt) == 48
        for tb in tbs:
            for r in range(4):
                d = vH(m, tb) + 2 * r; row = sST(n & 1) + 2 * tb
                o = Op("buffer_store_dwordx2 %s, v%d, s[%d:%d], s%d offen offset:%d%s" % (rtxt('v', d, 2), vSTO, sOUT, sOUT + 3, row, r * 384 + m * 128, cfg.stflag), 'vst1',
                       reads=V(d, 2) + V(vSTO) + S(sOUT, 4) + S(row))
                if n < 3: at(o, n * NM + int(stt[16 * cfg.stm.index(m) + 4 * tb + r]))
                else: o.deadline = self.nm * P
                self.add(o)
    def rows(self, base, n):
        for rho in range(0, 8, 2):
            self.add(Op("s_add_u32 s%d, s%d, %d" % (base + rho, sWIN, n * (DELTA if self.cfg.amap == 0 else 2 * 1572864) + rho * ROWB), 'salu', S(sWIN), S(base + rho)))
    def plan_x(self, n):
        cfg = self.cfg; par = n & 1
        for j in range(12):
            tl = (cfg.hd_x0 + j * cfg.hd_xstep) if n == 1 else ((n - 2) * NM + cfg.ldt[j])
            ts = (n - 1) * NM + (cfg.hd_stg if n == 1 else cfg.stg)[j]
            tl = int(tl)
            def ld(j=j, tl=tl):
                if j == 0: self.rows(sLD, n)
                for e in range(2): self.add(at((xload_f if cfg.frag else xload)(par, j, e, cfg), tl))
            def sg(j=j, ts=ts):
                for x in staging(par, j): self.add(at(x, ts, cfg.stgd))
            self.event(tl, ld)
            if not cfg.frag: self.event(ts, sg)
    def plan_pf(self):
        cfg = self.cfg
        for n in range(1, 4):
            t = (n - 1) * NM + cfg.pft
            def pf(n=n, t=t):
                self.add(at(Op("s_add_u32 s42, s17, L_win%d-L_pc_ref" % n, 'salu', S(17), S(42)), t - 2))
                self.add(at(Op("buffer_load_dword v8, v7, s[44:47], s42 offen", 'vld', V(7) + S(44, 4) + S(42), [('dummy', n)]), t))
            self.event(t, pf)
    def plan_head(self):
        cfg = self.cfg
        pubs = [(cfg.fm[0], 0, 12, vMK[0]), (cfg.fm[1], 0, 0, vMK[1]), (cfg.f1[0], 1, 24, vMK[0]), (cfg.f1[1], 1, 12, vMK[1]), (cfg.f1[2], 1, 0, vMK[2])]
        self.pubs = pubs
        for k, (tau, w, c, v) in enumerate(pubs):
            o = Op("s_cmp_eq_u32 s49, %d\n    s_cbranch_scc0 L_pub%d\n    s_waitcnt vmcnt(@%d+%d@)\n    ds_or_b32 v%d, v%d\nL_pub%d:" % (w, k, k, c, vFA, v, k), 'salu',
                   V(vFA) + V(v), [('FS', k)])
            o.cost = 8; self.add(at(o, tau, 4))
        def nload():
            NR = lambda k: 128 + 4 * k if k < 16 else 224 + 4 * (k - 16)
            for k in range(18):
                t = cfg.n0 + k * cfg.nstep
                if k % 4 == 0: self.add(at(Op("s_add_u32 s61, s60, %d" % (k * 1024), 'salu', S(60), S(61)), t - 2))
                o = Op("buffer_load_dwordx4 %s, v1, s[52:55], s61 offen offset:%d%s" % (rtxt('v', NR(k), 4), (k % 4) * 1024, cfg.wflag), 'vld',
                       V(1) + S(52, 4) + S(61) + [('BAR', 0)], V(NR(k), 4))
                o.lat = cfg.nlat * P; self.add(at(o, t))
            for k in range(18):
                for h in range(2):
                    self.add(at(Op("ds_write_b64 v%d, %s offset:%d" % (vNW, rtxt('v', NR(k) + 2 * h, 2), k * 1024 + 8 * h), 'dsw2',
                                   V(vNW) + V(NR(k) + 2 * h, 2), ['NW%d%d' % (k, h)]), cfg.n0 + k * cfg.nstep + cfg.nlat, 40))
            self.add(at(Op("ds_or_b32 v%d, v%d" % (vFA, vNB), 'dsw2', V(vFA) + V(vNB) + ['NW%d%d' % (k, h) for k in range(18) for h in range(2)], [('FS', 5)]),
                        cfg.n0 + 17 * cfg.nstep + cfg.nlat, 50))
        self.event(1, nload)
    def build(self):
        cfg = self.cfg
        self.plan_head()
        if cfg.pft: self.plan_pf()
        for n in range(1, 4): self.plan_x(n)
        ALL = [0, 1, 2, 3]; SETS = [64, 80, 96, 112]
        for n in range(4):
            self.n = n; self.par = n & 1; self.marks[n] = self.nm
            self.event(n * NM + 600, lambda n=n: self.rows(sST(n & 1), n)) if not (n == 3 and cfg.split) else self.event(n * NM + 400, lambda n=n: self.rows(sST(n & 1), n))
            if n == 3 and cfg.split:
                for cb in range(12): self.g1(cb, [0, 1])
                for cb in range(12): self.g1(cb, [2, 3])
                for cb in range(4): self.g2(cb)
                self.g4(0, [0, 1], [192, 208])
                for cb in (4, 5): self.g2(cb)
                self.g4(0, [2, 3], [64, 80])
                for cb in (6, 7): self.g2(cb)
                self.g4(1, ALL, [64, 80, 192, 208])
                for cb in range(8, 12): self.g2(cb)
                self.g4(2, ALL, SETS)
            elif n in cfg.ab:
                for cb in range(12): self.g1(cb, [0, 1])
                for cb in range(12): self.g1(cb, [2, 3])
                for cb in range(12): self.g2(cb)
                for m in range(3): self.g4(m, ALL, SETS)
            else:
                for cb in range(12): self.g1(cb, ALL)
                for cb in range(12): self.g2(cb)
                for m in range(3): self.g4(m, ALL, SETS)
            assert self.nm == (n + 1) * NM
        assert not self.ev, self.ev
        return self.ops

def build_all(cfg):
    global YB0
    YB0 = 192 if cfg.g3c else 208
    dry = Builder(cfg); dry.build()
    use = []
    for q, (k, first) in enumerate(zip(dry.wseq, dry.wfirst)):
        emi = first - cfg.wlead
        if cfg.chain:
            s_ = k % 6; emi = first - s_ - cfg.wlead + cfg.wsp * s_
            if q >= 16: emi = max(emi, dry.wlast[q - 16] + 1)
        if use: emi = max(emi, use[-1][2])
        assert q < 16 or dry.wlast[q - 16] < emi <= first - 8, (q, dry.wlast[q - 16], emi, first)
        use.append((k, first, emi))
    b = Builder(cfg, use)
    return b.build(), b

def raw_setup(a):
    a("""    s_cmp_ge_u32 s60, 36
    s_cselect_b32 s65, 36, 0
    s_cselect_b32 s97, 768, 0
    s_sub_u32 s65, s60, s65           ; t
    s_mul_i32 s66, s65, 43
    s_lshr_b32 s66, s66, 8            ; u = t / 6
    s_mul_i32 s67, s66, 6
    s_sub_u32 s67, s65, s67           ; s
    s_max_u32 s64, s49, 1
    s_mul_i32 s64, s64, 12288
    s_mul_i32 s61, s66, 36864
    s_add_u32 s61, s61, 384
    s_mul_i32 s62, s67, 36864
    s_add_u32 s62, s62, s97
    s_bitcmp1_b32 s63, 1
    s_cselect_b32 s61, s62, s61
    s_cselect_b32 s64, 0, s64
    s_cselect_b32 s97, 0, s97
    s_movk_i32 s62, 128
    s_movk_i32 s65, 9216
    s_mov_b32 s96, 32
    v_lshrrev_b32 v16, 3, v0
    v_and_b32 v17, 7, v0
    v_bfe_u32 v18, v0, 4, 1
    v_xor_b32 v17, v17, v18
    v_lshlrev_b32 v17, 4, v17
    v_mul_u32_u24 v16, 1152, v16
    s_cmp_eq_u32 s97, 0
    s_mov_b32 s18, 221184
    s_cbranch_scc1 L_raw_rows
    s_mov_b32 s18, 73728
    s_lshl_b32 s61, s66, 6
    s_movk_i32 s62, 6144
    s_movk_i32 s65, 18432
    s_mov_b32 s96, 0
    v_lshrrev_b32 v16, 2, v0
    v_mul_u32_u24 v16, 384, v16
    v_and_b32 v17, 3, v0
    v_lshlrev_b32 v17, 4, v17
L_raw_rows:""")
def raw_issue(a):
    a("""    s_cmp_eq_u32 s97, 0
    s_cselect_b32 s16, s6, s20
    s_cselect_b32 s17, s7, s21
    s_mov_b32 s19, 0x00020000
    s_mov_b32 m0, s64
    s_mov_b32 s97, 4
L_raw_lp:
    v_add_u32 v18, v16, v17
    s_add_u32 s42, s61, s62
    buffer_load_dwordx4 v18, s[16:19], s61 offen lds
    s_add_u32 m0, m0, 1024
    s_add_u32 s41, s42, s62
    buffer_load_dwordx4 v18, s[16:19], s42 offen lds
    s_add_u32 m0, m0, 1024
    s_add_u32 s61, s61, s65
    buffer_load_dwordx4 v18, s[16:19], s41 offen lds
    s_add_u32 m0, m0, 1024
    s_and_b32 s42, s97, 1
    s_mul_i32 s42, s42, s96
    s_lshl_b32 s42, s42, 1
    s_add_u32 s42, s42, s96
    v_xor_b32 v17, s42, v17
    s_sub_u32 s97, s97, 1
    s_cmp_lg_u32 s97, 0
    s_cbranch_scc1 L_raw_lp""")

def produce(a, cfg, waitA):
    a("""    s_mul_i32 s61, s66, 12
    s_add_u32 s61, s61, s67
    s_lshl_b32 s61, s61, 10           ; fragment (2u)*6 + s
    s_add_u32 s62, s61, 6144
    v_mov_b32 v27, v1
    v_bfe_u32 v22, v0, 2, 2           ; i >> 2
    v_and_b32 v23, 3, v0              ; i & 3
    v_lshrrev_b32 v26, 4, v0          ; g
    s_cmp_ge_u32 s60, 36
    s_cbranch_scc0 L_prod_A
    v_mul_u32_u24 v27, 6144, v23
    v_lshlrev_b32 v24, 8, v26
    v_lshlrev_b32 v25, 4, v22
    v_add3_u32 v27, v27, v24, v25
    s_lshr_b32 s61, s66, 1
    s_mul_i32 s61, s61, 24576
    s_and_b32 s62, s66, 1
    s_lshl_b32 s62, s62, 7
    s_add_u32 s61, s61, s62
    s_lshl_b32 s62, s67, 10
    s_add_u32 s61, s61, s62
    s_add_u32 s61, s61, 73728
    s_add_u32 s62, s61, 64
L_prod_A:
    v_mul_u32_u24 v24, 3072, v22
    v_lshl_add_u32 v24, v23, 7, v24
    v_bfe_u32 v25, v0, 1, 1
    v_lshl_add_u32 v25, v22, 1, v25   ; swizzle
    v_xor_b32 v25, v25, v26
    v_lshl_add_u32 v24, v25, 4, v24
    v_xor_b32 v25, 64, v24
    v_lshl_add_u32 v26, v26, 3, v22
    v_lshlrev_b32 v26, 6, v26
    v_lshl_add_u32 v26, v23, 3, v26
    v_add_u32 v26, s64, v26
    s_waitcnt vmcnt(0)""")
    waitA()
    if cfg.stamp: a("    s_memtime s[72:73]")
    def frags(base):
        for km in range(6):
            for t in range(2):
                d = base + 24 * t + 4 * km
                a("    ds_read_b128 v[%d:%d], v%d offset:%d" % (d, d + 3, 24 + (km & 1), (km >> 1) * 1024 + t * 512))
    frags(32)
    a("""    s_cmp_ge_u32 s60, 36
    s_cbranch_scc1 L_prod_N2
    v_add_u32 v24, s64, v24
    v_add_u32 v25, s64, v25""")
    frags(80)
    a("    s_branch L_prod_mm\nL_prod_N2:")
    for km in range(6):
        for h in range(2):
            for q in range(2):
                d = 80 + 24 * h + 4 * km + 2 * q
                a("    ds_read_b64_tr_b16 v[%d:%d], v26 offset:%d" % (d, d + 1, (32 * km + 4 * q) * 64 + 32 * h))
    a("""L_prod_mm:
    s_cmp_ge_u32 s60, 36
    s_cselect_b32 s65, 1.0, s%d       ; scale * log2(e) goes into M
    s_waitcnt lgkmcnt(0)""" % sKAP)
    for h in range(2):
        for km in range(6):
            for t in range(2):
                d = 128 + 8 * h + 4 * t
                c = "0" if km == 0 else "v[%d:%d]" % (d, d + 3)
                a("    v_mfma_f32_16x16x32_bf16 v[%d:%d], v[%d:%d], v[%d:%d], %s" % (d, d + 3, 32 + 24 * t + 4 * km, 35 + 24 * t + 4 * km, 80 + 24 * h + 4 * km, 83 + 24 * h + 4 * km, c))
    for h in range(2):
        if h == 1: a("    s_nop 7")
        if cfg.fold:
            for j in range(8): a("    v_mul_f32 v%d, s65, v%d" % (128 + 8 * h + j, 128 + 8 * h + j))
        for j in range(4):
            a("    v_cvt_pk_bf16_f32 v%d, v%d, v%d" % (144 + 4 * h + j, 128 + 8 * h + 2 * j, 129 + 8 * h + 2 * j))
        a("    buffer_store_dwordx4 v[%d:%d], v27, s[52:55], s%d offen" % (144 + 4 * h, 147 + 4 * h, 61 + h))

GUARD = "    s_sub_u32 s43, s43, 1\n    s_cbranch_scc1 L_end"
def prologue_roles(a, cfg):
    def setbit(v): a("    ds_or_b32 v%d, v%d" % (vFA, v))
    def setimm(bit):
        a("    v_mov_b32 v%d, %d" % (vFL, 1 << bit)); setbit(vFL)
    def waitmask(lab, sreg):
        a(lab + ":")
        a(GUARD)
        a("    ds_read_b32 v%d, v%d" % (vFL, vFA))
        a("    s_waitcnt lgkmcnt(0)")
        a("    v_readfirstlane_b32 s%d, v%d" % (sFL, vFL))
        a("    s_nop 1")
        a("    s_and_b32 s42, s%d, %s" % (sFL, sreg))
        a("    s_cmp_eq_u32 s42, %s" % sreg)
        a("    s_cbranch_scc0 %s" % lab)
    def wdma(n, first=0):
        for q in range(3 * first, 3 * (first + n)):
            a("    s_add_u32 s61, s60, %d" % (q * 4096))
            a("    s_mov_b32 m0, s61")
            a("    s_nop 0")
            for j in range(4):
                a("    buffer_load_dwordx4 v1, s[52:55], s61 offen offset:%d%s lds" % (j * 1024, cfg.wflag))
    xl = [xload(0, j, e, cfg).text for j in range(12) for e in range(2)]
    def land(nblk, younger0=0):
        younger = younger0
        for k in range(24):
            if k == cfg.pace or k % 2 == 1: a("    s_waitcnt vmcnt(%d)" % (23 - k + younger))
            if k == cfg.pace: setbit(31)
            if k % 2 == 1:
                for o in staging(0, k // 2): a("    " + o.text)
            if k % 4 == 3 and k // 4 < nblk: wdma(1, k // 4); younger += 12
    def arrive(lab):
        if cfg.stamp: a("    s_memtime s[92:93]")
        a("""    v_mov_b32 v32, 1
    s_lshr_b32 s60, s2, 3
    s_add_u32 s60, s60, s%d
    v_mov_b32 v33, s60
    s_mov_b64 exec, 1
    ds_add_rtn_u32 v34, v%d, v32 offset:4
    s_waitcnt lgkmcnt(0)
    v_readfirstlane_b32 s61, v34
    s_nop 1
    s_cmp_eq_u32 s61, 2
    s_cbranch_scc0 %s
    buffer_store_byte v32, v33, s[56:59], 0 offen
%s:
    s_mov_b64 exec, -1""" % (sXC, vFA, lab, lab))
    a("    s_lshl_b32 s42, 4096, s49\n    v_mov_b32 v31, s42")
    a("    s_cmp_eq_u32 s49, 0")
    a("    s_cbranch_scc1 L_w0")
    a("    s_cmp_lt_u32 s2, %d" % (NPROD * 8))
    a("    s_cbranch_scc0 L_noprod")
    a("L_prod:")
    def waitA():
        a("    s_bitcmp1_b32 s63, 0\n    s_cbranch_scc1 L_gotA")
        waitmask("L_wA", "0x100000")
        a("L_gotA:")
    produce(a, cfg, waitA)
    a("    s_bitcmp1_b32 s63, 0\n    s_cbranch_scc1 L_fb_next")
    a("    s_cmp_eq_u32 s49, 1")
    a("    s_cbranch_scc0 L_p23")
    if cfg.stamp: a("    s_memtime s[94:95]")
    for l in xl: a("    " + l)
    a("    s_waitcnt vmcnt(24)")
    arrive("L_nl1")
    land(0)
    a("    s_branch L_w1go")
    a("L_p23:")
    a("    s_waitcnt vmcnt(0)")
    arrive("L_nl2")
    a("L_noprod:")
    a("    s_lshl_b32 s60, 2048, s49")
    if cfg.quiet:
        a("    s_cmp_ge_u32 s49, %d\n    s_cselect_b32 s61, 0x200000, 0\n    s_or_b32 s60, s60, s61" % cfg.quiet)
    waitmask("L_wpace", "s60")
    if cfg.stamp: a("    s_memtime s[94:95]")
    for l in xl: a("    " + l)
    land(0)
    a("L_w1go:")
    if cfg.stamp: a("    s_memtime s[90:91]")
    a("    s_cmp_eq_u32 s49, 1")
    a("    s_cbranch_scc0 L_enter")
    waitmask("L_wgo", "0x200000")
    if cfg.stamp: a("    s_memtime s[88:89]")
    a("    s_mov_b32 s60, 36864")
    wdma(3)
    a("    v_mov_b32 v%d, 8\n    v_mov_b32 v%d, 16\n    v_mov_b32 v%d, 32" % tuple(vMK))
    a("    s_branch L_enter")
    a("L_w0:")
    if cfg.stamp: a("    s_memtime s[94:95]")
    a("    s_waitcnt vmcnt(24)"); setimm(20)
    land(0)
    if cfg.stamp: a("    s_memtime s[90:91]")
    a("""L_poll0:
    s_mov_b32 s61, 0
    v_min_u32 v33, 5, v0
    v_lshlrev_b32 v33, 2, v33
    s_mov_b32 s62, 0x01010101
L_poll:
    buffer_load_dword v34, v33, s[56:59], s%d offen%s
    s_add_u32 s61, s61, 1
    s_waitcnt vmcnt(0)
    v_cmp_ne_u32 vcc, s62, v34
    s_nop 4
    s_cbranch_vccz L_go
    s_sleep %d
    s_cmp_lt_u32 s61, %d
    s_cbranch_scc1 L_poll
    s_branch L_fb
L_go:""" % (sXC, cfg.pollflag, cfg.psleep, cfg.polls))
    if cfg.stamp: a("    s_memtime s[88:89]")
    a("    s_mov_b32 s60, 0")
    wdma(1)
    setimm(21)
    if cfg.m0first: a("    s_waitcnt vmcnt(0)"); setimm(0)
    wdma(2, 1)
    a("    v_mov_b32 v%d, 2\n    v_mov_b32 v%d, 4" % (vMK[0], vMK[1]))
    if not cfg.m0first: a("    s_waitcnt vmcnt(24)"); setimm(0)
    a("L_enter:")
    a("    s_mul_i32 s60, s49, 18432\n    s_add_u32 s60, s60, 73728\n    v_add_u32 v%d, s60, v1\n    s_lshl_b32 s61, 64, s49\n    v_mov_b32 v%d, s61" % (vNW, vNB))
    a("    s_waitcnt lgkmcnt(0)")

def fallback(a):
    a("""L_fb:
    s_mov_b32 s60, 0
    s_cmp_lt_u32 s2, %d               ; the sibling waves must be done with the LDS scratch
    s_cbranch_scc0 L_fb_task
L_fbw:
%s
    ds_read_b32 v34, v%d offset:4
    s_waitcnt lgkmcnt(0)
    v_readfirstlane_b32 s61, v34
    s_nop 1
    s_cmp_eq_u32 s61, 3
    s_cbranch_scc0 L_fbw
L_fb_task:
    s_mov_b32 s63, 3
    s_branch L_raw
L_fb_raw:
    s_bitcmp1_b32 s63, 1
    s_mov_b32 s63, 1
    s_cbranch_scc1 L_raw
    s_branch L_prod
L_fb_next:
    s_waitcnt vmcnt(0)
    s_add_u32 s60, s60, 1
    s_cmp_lt_u32 s60, %d
    s_cbranch_scc1 L_fb_task
    s_branch L_go""" % (NPROD * 8, GUARD, vFA, NTASK))

def slow_paths(a):
    for key in range(7):
        a("L_slow%d:" % key)
        a(GUARD)
        a("    ds_read_b32 v%d, v%d" % (vFL, vFA))
        a("    s_waitcnt lgkmcnt(0)")
        a("    v_readfirstlane_b32 s%d, v%d" % (sFL, vFL))
        a("    s_nop 1")
        a("    s_andn2_b32 s%d, %d, s%d" % (sFL, (1 << key) if key < 6 else 0x3c0, sFL))
        a("    s_cbranch_scc1 L_slow%d" % key)
        a("    s_branch L_ok%d" % key)

SCHED = dict(mfma_period=P, dsw_gap=56, vst1_gap=24, short=True)

def main_kernel(cfg):
    L = []
    a = L.append
    K = NAME + "_kernel"
    a(".globl %s\n.p2align 8\n.type %s,@function\n%s:" % (K, K, K))
    a("""    s_cmp_ge_u32 s2, 256
    s_cbranch_scc1 L_end""")
    if cfg.stamp: a("    s_memtime s[100:101]\n    s_memrealtime s[70:71]")
    a("""    s_load_dwordx4 s[4:7], s[0:1], 0        ; x, wqkv
    s_load_dwordx4 s[20:23], s[0:1], 16     ; wo, out
    s_load_dwordx4 s[56:59], s[0:1], 32     ; debug, ws
    v_lshrrev_b32 v16, 6, v0
    v_and_b32 v0, 63, v0
    s_getpc_b64 s[44:45]
L_pc_ref:
    v_readfirstlane_b32 s49, v16            ; wave
    s_mov_b32 s46, L_code_end-L_pc_ref
    s_mov_b32 s47, 0x00020000
    v_lshlrev_b32 v7, 6, v0
    s_lshr_b32 s60, s2, 3                   ; rank of this workgroup among those dealt to one die
    s_and_b32 s42, s60, 3
    s_lshl_b32 s42, s42, 2
    s_add_u32 s42, s42, s49
    s_lshl_b32 s42, s42, 12
    buffer_load_dword v8, v7, s[44:47], s42 offen
    s_cmp_lt_u32 s60, %d
    s_cbranch_scc0 L_setup
    s_cmp_ge_u32 s60, 12
    s_cselect_b32 s61, 12, 0
    s_cselect_b32 s62, 36, 0
    s_sub_u32 s61, s60, s61                 ; r
    s_and_b32 s64, s61, 1
    s_mul_i32 s64, s64, 3
    s_max_u32 s65, s49, 1
    s_add_u32 s64, s64, s65
    s_sub_u32 s64, s64, 1                   ; u
    s_mul_i32 s64, s64, 6
    s_lshr_b32 s61, s61, 1                  ; s
    s_add_u32 s60, s64, s61
    s_add_u32 s60, s60, s62                 ; task
    s_cmp_eq_u32 s49, 0
    s_cselect_b32 s63, 2, 0
L_raw:""" % NPROD)
    raw_setup(a)
    if cfg.stamp: a("    s_memtime s[72:73]")
    a("    s_waitcnt lgkmcnt(0)")
    if cfg.stamp: a("    s_memtime s[92:93]")
    raw_issue(a)
    a("    s_bitcmp1_b32 s63, 0\n    s_cbranch_scc1 L_fb_raw")
    if cfg.stamp: a("    s_memtime s[98:99]")
    a("""L_setup:
    s_mov_b32 s43, 0x400000
    v_lshlrev_b32 v1, 4, v0                 ; lane*16
    v_add_u32 v2, 0x10000, v1
    v_add_u32 v3, 0x20000, v1
    v_lshrrev_b32 v16, 3, v0
    v_and_b32 v17, 7, v0
    v_lshrrev_b32 v18, 4, v0
    v_xor_b32 v17, v17, v18
    v_lshlrev_b32 v17, 4, v17
    v_mul_u32_u24 v16, 384, v16
    v_add_u32 v9, v16, v17
    v_xor_b32 v10, 64, v9
    v_add_u32 v10, 196608, v10
    s_lshl_b32 s52, s49, 11
    s_add_u32 s52, s52, 147456
    v_lshlrev_b32 v16, 3, v0
    v_add_u32 v4, s52, v16
    v_and_b32 v16, 15, v0                   ; i
    v_lshrrev_b32 v17, 4, v0                ; g
    v_lshrrev_b32 v18, 1, v16
    v_xor_b32 v18, v18, v17
    v_lshlrev_b32 v18, 3, v18
    v_lshl_add_u32 v18, v16, 6, v18
    v_add_u32 v5, s52, v18
    v_xor_b32 v6, 32, v5
    v_lshrrev_b32 v16, 5, v0                ; g>>1
    v_mul_u32_u24 v16, 196608, v16
    v_lshrrev_b32 v17, 4, v0
    v_and_b32 v17, 1, v17
    v_mul_u32_u24 v17, 1536, v17
    v_and_b32 v18, 15, v0
    v_lshlrev_b32 v18, 3, v18
    v_add3_u32 v11, v16, v17, v18
    s_nop 0""")
    if cfg.amap == 0:
        a("    s_lshr_b32 s53, s2, 4\n    s_and_b32 s54, s2, 15")
    else:
        a("    s_and_b32 s53, s2, 7\n    s_lshl_b32 s53, s53, 3\n    s_lshr_b32 s54, s2, 7\n    s_add_u32 s53, s53, s54\n    s_lshr_b32 s54, s2, 3\n    s_and_b32 s54, s54, 15")
    a("""    s_mul_i32 s53, s53, 1572864
    s_lshl_b32 s54, s54, 2
    s_add_u32 s54, s54, s49
    s_mul_i32 s54, s54, 3072
    s_add_u32 s53, s53, s54""")
    for rho in range(0, 8, 2):
        a("    s_add_u32 s%d, s53, %d" % (sLD + rho, rho * ROWB))
    a("    v_mov_b32 v%d, %d\n    v_mov_b32 v30, 0\n    v_mov_b32 v31, 0\n    ds_write_b64 v%d, v[30:31]" % (vFA, FLAG, vFA))
    a("    s_getreg_b32 s%d, hwreg(HW_REG_XCC_ID, 0, 3)" % sXC)
    a("    s_waitcnt lgkmcnt(0)")
    a("    s_mov_b32 s8, s4\n    s_mov_b32 s9, s5\n    s_mov_b32 s10, %d\n    s_mov_b32 s11, 0x00020000" % XBYTES)
    if not cfg.x0pre: a("    s_barrier")
    a("    s_cmp_eq_u32 s49, 0\n    s_cbranch_scc0 L_nox0")
    for j in range(12):
        for e in range(2): a("    " + xload(0, j, e, cfg).text)
    a("L_nox0:")
    if cfg.x0pre: a("    s_barrier")
    a("    s_mov_b32 s3, s53") if not cfg.stamp else a("    s_mov_b32 s99, s53")
    a("    s_mov_b32 s12, s22\n    s_mov_b32 s13, s23\n    s_mov_b32 s14, %d\n    s_mov_b32 s15, 0x00020000" % XBYTES)
    a("    s_mov_b32 s%d, %s" % (sKAP, f32hex(KAPPA)))
    a("    s_mov_b32 s50, s58\n    s_mov_b32 s51, s59")
    a("    s_mov_b32 s58, 256\n    s_mov_b32 s59, 0x00020000")
    if cfg.stamp:
        a("    s_mov_b64 s[22:23], s[70:71]\n    s_mov_b32 s3, s98")
        a("    s_add_u32 s68, s50, 0x300000\n    s_addc_u32 s69, s51, 0\n    s_mov_b32 s70, 0x200000\n    s_mov_b32 s71, 0x00020000")
        a("    s_lshl_b32 s98, s2, 2\n    s_add_u32 s98, s98, s49\n    s_lshl_b32 s98, s98, 7")
    a("    s_mul_i32 s52, s%d, %d\n    s_add_u32 s52, s50, s52\n    s_addc_u32 s53, s51, 0\n    s_mov_b32 s54, %d\n    s_mov_b32 s55, 0x00020000" % (sXC, WIMG, WIMG))
    a("    s_lshl_b32 s%d, s%d, 5" % (sXC, sXC))
    prologue_roles(a, cfg)
    a("    s_mov_b32 s%d, s%d" % (sWIN, 99 if cfg.stamp else 3))
    a("    s_lshl_b32 s17, s49, 12")
    if cfg.frag:
        a("    v_and_b32 v16, 15, v0\n    v_lshrrev_b32 v17, 3, v16\n    v_mul_u32_u24 v17, 196608, v17\n    v_and_b32 v18, 7, v16\n    v_mul_u32_u24 v18, 384, v18")
        a("    v_lshrrev_b32 v16, 4, v0\n    v_lshlrev_b32 v16, 4, v16\n    v_add3_u32 v31, v16, v17, v18")
    ops, B = build_all(cfg)
    order, stats = schedule(ops, **SCHED)
    mt = [o.t for o in order if o.kind == 'mfma']
    sys.stderr.write("schedule: %s windows start at %s last mfma %d\n" % ({k: v for k, v in stats.items() if k != 'late'}, [mt[n * NM] for n in range(4)], mt[-1]))
    lines = finalize(order, State(), exact=True)
    import re as _re
    nv = 0; out = []
    for l in lines:
        m = _re.search(r"@(\d+)\+(\d+)@", l)
        if m: l = l.replace(m.group(0), str(min(63, int(m.group(2)) + nv)))
        if "buffer_" in l: nv += 1
        out.append(l)
    lines = []; n = 0
    for l in out:
        if "v_mfma" in l:
            if n % NM == 0: lines.append("L_win%d:" % (n // NM))
            n += 1
        lines.append(l)
    txt = "\n".join(lines)
    assert all(txt.index("L_pub%d:" % k) < txt.index("L_slow%d" % b) for k, b in enumerate(PUBB)) and txt.index("ds_or_b32 v%d, v%d" % (vFA, vNB)) < txt.index("L_slow6")
    if cfg.stamp:
        marks = {0: 74, 48: 76, 112: 78, 176: 80, 240: 82, 304: 84}
        hl = []; n = 0
        def itstamp(slot):
            hl.append("    s_memtime s[62:63]\n    s_waitcnt lgkmcnt(0)\n    v_mov_b32 v18, s62\n    v_mov_b32 v19, s63\n    v_mov_b32 v17, s98\n    s_mov_b64 exec, 1")
            hl.append("    buffer_store_dwordx2 v[18:19], v17, s[68:71], 0 offen offset:%d\n    s_mov_b64 exec, -1" % (8 * slot))
        for l in lines:
            if "v_mfma" in l:
                if n in marks: hl.append("    s_memtime s[%d:%d]" % (marks[n], marks[n] + 1))
                if n == 368:
                    hl.append("    s_memtime s[86:87]\n    s_waitcnt lgkmcnt(0)\n    s_add_u32 s66, s98, 0x40000\n    v_mov_b32 v17, s66\n    s_mov_b64 exec, 1")
                    for i in range(13):
                        hl.append("    v_mov_b32 v18, s%d\n    buffer_store_dword v18, v17, s[68:71], 0 offen offset:%d" % (72 + 2 * i if i < 12 else 3, 4 * i))
                    hl.append("    v_mov_b32 v17, s98\n    v_mov_b32 v18, s100\n    v_mov_b32 v19, s101\n    buffer_store_dwordx2 v[18:19], v17, s[68:71], 0 offen")
                    hl.append("    v_mov_b32 v18, s22\n    v_mov_b32 v19, s23\n    buffer_store_dwordx2 v[18:19], v17, s[68:71], 0 offen offset:64\n    s_mov_b64 exec, -1")
                    itstamp(1); itstamp(2)
                if cfg.probe is not None and n >= cfg.probe and (n - cfg.probe) % 64 == 0 and (n - cfg.probe) // 64 < 13:
                    k = (n - cfg.probe) // 64; hl.append("    s_memtime s[%d:%d]" % (72 + 2 * k, 73 + 2 * k))
                for slot, idx in ((3, 368 + NM), (4, 368 + 2 * NM), (5, 368 + 3 * NM), (6, 672 + 3 * NM)):
                    if n == idx: itstamp(slot)
                n += 1
            hl.append(l)
        lines = hl
    L += lines
    if cfg.stamp:
        a("    s_waitcnt vmcnt(0)")
        stamp(a, 7); stamp(a, 9, True)
        if cfg.probe is not None:
            a("    s_add_u32 s66, s98, 0x60000\n    v_mov_b32 v17, s66\n    s_mov_b64 exec, 1")
            for i in range(13): a("    v_mov_b32 v18, s%d\n    buffer_store_dword v18, v17, s[68:71], 0 offen offset:%d" % (72 + 2 * i, 4 * i))
            sys.stderr.write("scheduled probe deltas: %s\n" % [mt[min(len(mt) - 1, cfg.probe + 64 * (k + 1))] - mt[cfg.probe + 64 * k] for k in range(12)])
    a("L_end:")
    a("    s_endpgm")
    slow_paths(a)
    fallback(a)
    a("L_code_end:")
    nw = sum(1 for l in lines if 's_waitcnt' in l); nn = sum(1 for l in lines if 's_nop' in l)
    sys.stderr.write("lines=%d waits=%d nops=%d\n" % (len(lines), nw, nn))
    return "\n".join(L) + "\n"

MAIN_DESC = """.amdhsa_kernel %s_kernel
  .amdhsa_next_free_vgpr 512
  .amdhsa_next_free_sgpr 102
  .amdhsa_accum_offset 256
  .amdhsa_group_segment_fixed_size 0
  .amdhsa_kernarg_size 48
  .amdhsa_user_sgpr_count 2
  .amdhsa_user_sgpr_kernarg_segment_ptr 1
  .amdhsa_system_sgpr_workgroup_id_x 1
.end_amdhsa_kernel
""" % NAME

def generate(cfg):
    s = HEADER
    s += "; @launch grid=(256,1,1) block=(256,1,1) lds=163840\n"
    s += '.amdgcn_target "amdgcn-amd-amdhsa--gfx950"\n.text\n'
    s += main_kernel(cfg)
    s += '.section .rodata,"a"\n.p2align 6\n' + MAIN_DESC
    return s

if __name__ == "__main__":
    ap = argparse.ArgumentParser()
    ap.add_argument("-o", default="/code/%s.s" % NAME)
    ap.add_argument("--stamp", action="store_true")
    ap.add_argument("--set", action="append", default=[])
    args = ap.parse_args()
    cfg = Cfg(); cfg.stamp = args.stamp
    for kv in args.set:
        k, v = kv.split("="); setattr(cfg, k, eval(v))
    open(args.o, "w").write(generate(cfg))
```

```python
import sys, struct, math, argparse
sys.path.insert(0, "gen"); sys.path.insert(0, "gen")
from sched import *

NAME = "standalone__swin_window_attn__vision"
DELTA = 25165824
XBYTES = 100663296
ROWB = 196608
WIMG = 147456
KAPPA = (192 ** -0.5) * math.log2(math.e)
NM = 768
P = 16
def f32hex(x): return "0x%08x" % struct.unpack("<I", struct.pack("<f", x))[0]

HEADER = """; Kernarg layout for this problem (48 bytes, ptrs only, base s[0:1]):
"""

vWB = [1, 2, 3]; vSTO = 11
vMX = [12, 13, 14, 15]; vSM = [20, 21, 22, 23]; vTMP = 16
def vS(kb, tb): return 32 + tb * 16 + kb * 4
def vP(tb, v): return 32 + tb * 8 + v * 4
def vACC(h, i): return 96 + h * 16 + i * 4
def vVB(cb, v): return 128 + cb * 8 + v * 4
def vYB(tb, u=1): return (208 if u & 1 else YB0) + tb * 4
YB0 = 208
def vH(m, tb): return (224, 128, 160)[m] + tb * 8
def aXF(par, tb, s): return par * 96 + (tb * 6 + s) * 4
def aWR(q): return 192 + (q % 16) * 4
sX = 8; sOUT = 12; sLD = 24; sKAP = 40
def sST(par): return 32 + par
sWIN = 16

class Cfg:
    ldflag = " nt"; stflag = " sc1"; wflag = ""; wlead = 26; stamp = False
    ldt = (676, 721, 766, 811, 856, 901, 946, 991, 1180, 1225, 1270, 1315); ldlat = 150; stgd = 24
    stt = ((9, 760, 27), (22, 1003, 8), (5, 1190, 30), (12, 1335, 9)); stm = (1, 2, 0)
    stt_2 = ((48, 750, 8),); amap = 1
    stg = (70, 115, 160, 205, 250, 295, 340, 378, 716, 730, 744, 758)
    hd_x0 = 170; hd_xstep = 25; hd_stg = (320, 345, 370, 690, 700, 710, 720, 730, 740, 750, 760, 770)
    n0 = 24; nstep = 6; nlat = 80
    g3c = 1; fold = 1; frag = 0; chain = 1; wsp = 2; wdl = 6; probe = None; hop = 128; hopw = 2; pstep = 64; mode = 'nnns'; stt_0 = None; ldt_2 = None; stg_2 = None; xpf = (); xpflag = ""; ab = (); split = 1; pft = 0
    fm = (10, 60); f1 = (30, 80, 130); pace = 3; polls = 400; pollflag = " nt"; psleep = 4; x0pre = 0; m0first = 0; quiet = 0; gate = 1

def stamp(a, idx, rt=False):
    a("    %s s[62:63]" % ("s_memrealtime" if rt else "s_memtime"))
    a("    s_waitcnt lgkmcnt(0)")
    a("    v_mov_b32 v26, s62\n    v_mov_b32 v27, s63\n    v_mov_b32 v28, s98")
    a("    s_mov_b64 exec, 1")
    a("    buffer_store_dwordx2 v[26:27], v28, s[68:71], 0 offen offset:%d" % (idx * 8))
    a("    s_mov_b64 exec, -1")

def mfma(d, a_kind, a, b_kind, b, first, tag=""):
    c = "0" if first else rtxt('v', d, 4)
    cr = [] if first else V(d, 4)
    return Op("v_mfma_f32_16x16x32_bf16 %s, %s, %s, %s" % (rtxt('v', d, 4), rtxt(a_kind, a, 4), rtxt(b_kind, b, 4), c),
              'mfma', reads=regs(a_kind, a, 4) + regs(b_kind, b, 4) + cr, writes=V(d, 4), creads=cr, tag=tag, passes=4)

def wread(q, k, **kw):
    off = k * 1024
    base = vWB[off // 65536]
    return Op("ds_read_b128 %s, v%d offset:%d" % (rtxt('a', aWR(q), 4), base, off % 65536), 'dsr',
              reads=V(base), writes=A(aWR(q), 4), tag="W%d" % k, **kw)

def cvt(dst, s0, s1, **kw):
    return Op("v_cvt_pk_bf16_f32 v%d, v%d, v%d" % (dst, s0, s1), 'valu', reads=V(s0) + V(s1), writes=V(dst), **kw)

XPAIRS = [(tb, m) for tb in range(4) for m in range(3)]
vLDE = [9, 10]; vSTW = 4; vSTR = [5, 6]
def xload(par, j, e, cfg, **kw):
    tb, m = XPAIRS[j]; d = aXF(par, tb, 2 * m + e)
    o = Op("buffer_load_dwordx4 %s, v%d, s[%d:%d], s%d offen offset:%d%s" %
           (rtxt('a', d, 4), vLDE[e], sX, sX + 3, sLD + 2 * tb, 128 * m, cfg.ldflag), 'vld',
           reads=V(vLDE[e]) + S(sX, 4) + S(sLD + 2 * tb), writes=A(d, 4), **kw)
    o.lat = cfg.ldlat * P
    return o
def xload_f(par, j, e, cfg):
    tb, m = XPAIRS[j]; d = aXF(par, tb, 2 * m + e)
    return Op("buffer_load_dwordx4 %s, v31, s[%d:%d], s%d offen offset:%d%s" % (rtxt('a', d, 4), sX, sX + 3, sLD + 2 * tb, 128 * m + 64 * e, cfg.ldflag), 'vld',
              reads=V(31) + S(sX, 4) + S(sLD + 2 * tb), writes=A(d, 4))
def staging(par, j, **kw):
    tb, m = XPAIRS[j]; o = []
    for e in range(2):
        for h in range(2):
            d = aXF(par, tb, 2 * m + e) + 2 * h
            o.append(Op("ds_write_b64 v%d, %s offset:%d" % (vSTW, rtxt('a', d, 2), 1024 * h + 512 * e), 'dsw2',
                        reads=V(vSTW) + A(d, 2), writes=[('STG', e, h)] and ['STG%d%d' % (e, h)], **kw))
    for sp in range(2):
        d = aXF(par, tb, 2 * m + sp)
        o.append(Op("ds_read2_b64 %s, v%d offset0:0 offset1:128" % (rtxt('a', d, 4), vSTR[sp]), 'dsr',
                    reads=V(vSTR[sp]) + ['STG00', 'STG01', 'STG10', 'STG11'], writes=A(d, 4), **kw))
    return o

def vop(text, rd, wr, kind='valu'): return Op(text, kind, rd, wr)

def cross_reduce(o, r, opn, tmp, post):
    a_, b_, c_, d_ = r
    o.append(vop("v_permlane16_swap_b32 v%d, v%d" % (a_, b_), V(a_) + V(b_), V(a_) + V(b_), 'perm'))
    o.append(vop("v_permlane16_swap_b32 v%d, v%d" % (c_, d_), V(c_) + V(d_), V(c_) + V(d_), 'perm'))
    o.append(vop("%s v%d, v%d, v%d" % (opn, a_, a_, b_), V(a_) + V(b_), V(a_)))
    o.append(vop("%s v%d, v%d, v%d" % (opn, c_, c_, d_), V(c_) + V(d_), V(c_)))
    o.append(vop("v_permlane32_swap_b32 v%d, v%d" % (a_, c_), V(a_) + V(c_), V(a_) + V(c_), 'perm'))
    o.append(vop("%s v%d, v%d, v%d" % (opn, a_, a_, c_), V(a_) + V(c_), V(a_)))
    post(a_)
    o.append(vop("v_mov_b32 v%d, v%d" % (c_, a_), V(a_), V(c_)))
    o.append(vop("v_permlane32_swap_b32 v%d, v%d" % (a_, c_), V(a_) + V(c_), V(a_) + V(c_), 'perm'))
    o.append(vop("v_mov_b32 v%d, v%d" % (b_, a_), V(a_), V(b_)))
    o.append(vop("v_mov_b32 v%d, v%d" % (d_, c_), V(c_), V(d_)))
    o.append(vop("v_permlane16_swap_b32 v%d, v%d" % (a_, b_), V(a_) + V(b_), V(a_) + V(b_), 'perm'))
    o.append(vop("v_permlane16_swap_b32 v%d, v%d" % (c_, d_), V(c_) + V(d_), V(c_) + V(d_), 'perm'))

def cross_reduce2(o, r, opn, post):
    a_, b_ = r
    o.append(vop("v_permlane16_swap_b32 v%d, v%d" % (a_, b_), V(a_) + V(b_), V(a_) + V(b_), 'perm'))
    o.append(vop("%s v%d, v%d, v%d" % (opn, a_, a_, b_), V(a_) + V(b_), V(a_)))
    o.append(vop("v_mov_b32 v%d, v%d" % (b_, a_), V(a_), V(b_)))
    o.append(vop("v_permlane32_swap_b32 v%d, v%d" % (a_, b_), V(a_) + V(b_), V(a_) + V(b_), 'perm'))
    o.append(vop("%s v%d, v%d, v%d" % (opn, a_, a_, b_), V(a_) + V(b_), V(a_)))
    post(a_)
    o.append(vop("v_mov_b32 v%d, v%d" % (b_, a_), V(a_), V(b_)))
    o.append(vop("v_permlane16_swap_b32 v%d, v%d" % (a_, b_), V(a_) + V(b_), V(a_) + V(b_), 'perm'))

def softmax(tbs, fold=False):
    o = []
    def red(regs, opn, post):
        if len(tbs) == 4: cross_reduce(o, regs, opn, None, post)
        else: cross_reduce2(o, [regs[t] for t in tbs], opn, post)
    for tb in tbs:
        e = [vS(0, tb) + i for i in range(16)]; m = vMX[tb]
        o.append(vop("v_max3_f32 v%d, v%d, v%d, v%d" % (m, e[0], e[1], e[2]), V(e[0]) + V(e[1]) + V(e[2]), V(m)))
        for i in range(3, 15, 2):
            o.append(vop("v_max3_f32 v%d, v%d, v%d, v%d" % (m, m, e[i], e[i + 1]), V(m) + V(e[i]) + V(e[i + 1]), V(m)))
        o.append(vop("v_max_f32 v%d, v%d, v%d" % (m, m, e[15]), V(m) + V(e[15]), V(m)))
    red(vMX, "v_max_f32", (lambda z: None) if fold else (lambda z: o.append(vop("v_mul_f32 v%d, s%d, v%d" % (z, sKAP, z), V(z) + S(sKAP), V(z)))))
    for tb in tbs:
        e = [vS(0, tb) + i for i in range(16)]; m = vMX[tb]; l = vSM[tb]
        for i in range(16):
            if fold: o.append(vop("v_sub_f32 v%d, v%d, v%d" % (e[i], e[i], m), V(e[i]) + V(m), V(e[i])))
            else: o.append(vop("v_fma_f32 v%d, v%d, s%d, -v%d" % (e[i], e[i], sKAP, m), V(e[i]) + V(m) + S(sKAP), V(e[i])))
            o.append(vop("v_exp_f32 v%d, v%d" % (e[i], e[i]), V(e[i]), V(e[i]), 'trans'))
            if i == 1: o.append(vop("v_add_f32 v%d, v%d, v%d" % (l, e[0], e[1]), V(e[0]) + V(e[1]), V(l)))
            elif i > 1: o.append(vop("v_add_f32 v%d, v%d, v%d" % (l, l, e[i]), V(l) + V(e[i]), V(l)))
    red(vSM, "v_add_f32", lambda z: o.append(vop("v_rcp_f32 v%d, v%d" % (z, z), V(z), V(z), 'trans')))
    for tb in tbs:
        base = vS(0, tb); l = vSM[tb]
        for j in range(8):
            o.append(vop("v_mul_f32 v%d, v%d, v%d" % (base + 2 * j, base + 2 * j, l), V(base + 2 * j) + V(l), V(base + 2 * j)))
            o.append(vop("v_mul_f32 v%d, v%d, v%d" % (base + 2 * j + 1, base + 2 * j + 1, l), V(base + 2 * j + 1) + V(l), V(base + 2 * j + 1)))
            o.append(cvt(vP(tb, 0) + j, base + 2 * j, base + 2 * j + 1))
    return o

FLAG = WIMG + 4 * 2048
vFA = 29; vFL = 30; sFL = 41; vMK = [26, 27, 28]; sXC = 48; NPROD = 24; vNW = 24; vNB = 25
NTASK = 72
PUBB = (1, 2, 3, 4, 5)

def at(o, idx, slack=6):
    o.emi = max(0, idx); o.deadline = max(0, idx + slack) * P; return o

class Builder:
    def __init__(self, cfg, wuse=None):
        self.cfg = cfg; self.ops = []; self.nm = 0; self.pending = None
        self.wuse = wuse; self.wseq = []; self.wfirst = []; self.wlast = []; self.nw = 0
        self.ev = []; self.seen = set(); self.marks = {}
    def add(self, o): self.ops.append(o); return o
    def event(self, idx, fn): self.ev.append((idx, len(self.ev), fn)); self.ev.sort(key=lambda e: e[:2])
    def check(self, key, mask, idx, after):
        cfg = self.cfg
        rd = Op("ds_read_b32 v%d, v%d" % (vFL, vFA), 'dsr', V(vFA) + after, V(vFL), deadline=max(0, idx * P - 200)); rd.emi = max(0, idx - 12)
        rf = Op("v_readfirstlane_b32 s%d, v%d" % (sFL, vFL), 'valu', V(vFL), S(sFL), deadline=idx * P)
        if mask & (mask - 1) == 0:
            br = Op("s_bitcmp1_b32 s%d, %d\n    s_cbranch_scc0 L_slow%d\nL_ok%d:" % (sFL, mask.bit_length() - 1, key, key), 'salu', S(sFL), [('BAR', key)], deadline=idx * P + 16)
        else:
            br = Op("s_andn2_b32 s%d, %d, s%d\n    s_cbranch_scc1 L_slow%d\nL_ok%d:" % (sFL, mask, sFL, key, key), 'salu', S(sFL), [('BAR', key)] + S(sFL), deadline=idx * P + 16)
        br.cost = 8
        for o in (rd, rf, br): self.add(o)
    def addm(self, o):
        cfg = self.cfg
        while self.ev and self.ev[0][0] <= self.nm: self.ev.pop(0)[2]()
        if self.wuse is not None:
            while self.nw < len(self.wuse) and self.wuse[self.nw][2] <= self.nm:
                q = self.nw; k, first, emi = self.wuse[q]
                r = wread(q, k, deadline=min(first * P - 150, (emi + cfg.wdl) * P)); r.emi = max(0, emi)
                if first < NM:
                    key = min(k // 12, 6)
                    if key not in self.seen:
                        self.seen.add(key)
                        self.check(key, (1 << key) if key < 6 else 0x3c0, max(0, emi - 2),
                                   [('FS', j) for j in range(5) if key >= PUBB[j]] + ([('FS', 5)] if key == 6 else []))
                    r.reads.append(('BAR', key))
                if self.nm == 0 and q < 8: r.writes.append('W0G%d' % q); o.reads.append('W0G%d' % q)
                self.add(r); self.nw += 1
        self.nm += 1; return self.add(o)
    def w_new(self, k):
        self.wseq.append(k); self.wfirst.append(self.nm); self.wlast.append(self.nm); return len(self.wseq) - 1
    def run_pending(self):
        if self.pending is not None:
            p = self.pending; self.pending = None; p()
    def g3(self, u, tbs):
        for tb in tbs:
            for kb in range(4):
                for uu in ((u - 1, u) if self.cfg.g3c else (u,)):
                    self.addm(mfma(vS(kb, tb), 'a', aXF(self.par, kb, uu), 'v', vYB(tb, uu), first=(uu == 0), tag="G3 u%d" % uu))
        if u == 5:
            for o in softmax(tbs, self.cfg.fold): self.add(o)
    def g1(self, cb, tbs):
        hh = cb & 1
        if self.cfg.chain:
            qs = {}
            for i, tb in enumerate(tbs):
                for s in range(6):
                    if s not in qs: qs[s] = self.w_new(6 * cb + s)
                    self.wlast[qs[s]] = self.nm
                    self.addm(mfma(vACC(hh, tb), 'a', aWR(qs[s]), 'a', aXF(self.par, tb, s), first=(s == 0), tag="G1 cb%d s%d" % (cb, s)))
                if i == 1: self.run_pending()
        else:
          for s in range(6):
            q = self.w_new(6 * cb + s)
            for tb in tbs:
                self.wlast[q] = self.nm
                self.addm(mfma(vACC(hh, tb), 'a', aWR(q), 'a', aXF(self.par, tb, s), first=(s == 0), tag="G1 cb%d s%d" % (cb, s)))
            if s == (2 if len(tbs) == 4 else 4): self.run_pending()
        for tb in tbs:
            for j in range(2):
                self.add(cvt(vYB(tb, cb // 2) + 2 * hh + j, vACC(hh, tb) + 2 * j, vACC(hh, tb) + 2 * j + 1))
        if hh == 1 and (not self.cfg.g3c or cb % 4 == 3): self.pending = (lambda u=cb // 2: self.g3(u, tbs))
    def g2(self, cb):
        st = cb & 1
        if self.cfg.chain:
            qs = {}
            for kb in range(4):
                for s in range(6):
                    if s not in qs: qs[s] = self.w_new(72 + 6 * cb + s)
                    self.wlast[qs[s]] = self.nm
                    self.addm(mfma(vACC(st, kb), 'a', aXF(self.par, kb, s), 'a', aWR(qs[s]), first=(s == 0), tag="G2 cb%d s%d" % (cb, s)))
                if kb == 1: self.run_pending()
        else:
          for s in range(6):
            q = self.w_new(72 + 6 * cb + s)
            for kb in range(4):
                self.wlast[q] = self.nm
                self.addm(mfma(vACC(st, kb), 'a', aXF(self.par, kb, s), 'a', aWR(q), first=(s == 0), tag="G2 cb%d s%d" % (cb, s)))
            if s == 2: self.run_pending()
        for v in range(2):
            for j in range(4):
                src = vACC(st, 2 * v + j // 2) + 2 * (j % 2)
                self.add(cvt(vVB(cb, v) + j, src, src + 1))
    def g4(self, m, tbs, sets):
        cfg = self.cfg; n = self.n
        for tb, ob in zip(tbs, sets):
            for v, q in ([(v, q) for q in range(4) for v in range(2)] if cfg.chain else [(v, q) for v in range(2) for q in range(4)]):
                    self.addm(mfma(ob + 4 * q, 'v', vP(tb, v), 'v', vVB(4 * m + q, v), first=(v == 0), tag="G4 m%d tb%d" % (m, tb)))
            for r in range(4):
                self.add(cvt(vH(m, tb) + 2 * r, ob + r, ob + 4 + r))
                self.add(cvt(vH(m, tb) + 2 * r + 1, ob + 8 + r, ob + 12 + r))
        stt = [t0 + i * dt for (c, t0, dt) in (cfg.stt_0 or cfg.stt, cfg.stt, cfg.stt_2, cfg.stt)[n] for i in range(c)]
        assert len(stt) == 48
        stm = (0, 1, 2) if cfg.mode[n] == 's' else cfg.stm
        for tb in tbs:
            for r in range(4):
                d = vH(m, tb) + 2 * r; row = sST(n & 1) + 2 * tb
                o = Op("buffer_store_dwordx2 %s, v%d, s[%d:%d], s%d offen offset:%d%s" % (rtxt('v', d, 2), vSTO, sOUT, sOUT + 3, row, r * 384 + m * 128, cfg.stflag), 'vst1',
                       reads=V(d, 2) + V(vSTO) + S(sOUT, 4) + S(row))
                if n < 3: at(o, n * NM + int(stt[16 * stm.index(m) + 4 * tb + r]))
                else: o.deadline = self.nm * P
                self.add(o)
    def rows(self, base, n):
        for rho in range(0, 8, 2):
            self.add(Op("s_add_u32 s%d, s%d, %d" % (base + rho, sWIN, n * (DELTA if self.cfg.amap == 0 else 2 * 1572864) + rho * ROWB), 'salu', S(sWIN), S(base + rho)))
    def plan_x(self, n):
        cfg = self.cfg; par = n & 1
        for j in range(12):
            tl = (cfg.hd_x0 + j * cfg.hd_xstep) if n == 1 else ((n - 2) * NM + ((cfg.ldt_2 or cfg.ldt) if n == 2 else cfg.ldt)[j])
            ts = (n - 1) * NM + (cfg.hd_stg if n == 1 else ((cfg.stg_2 or cfg.stg) if n == 2 else cfg.stg))[j]
            tl = int(tl)
            def ld(j=j, tl=tl):
                if j == 0: self.rows(sLD, n)
                for e in range(2): self.add(at((xload_f if cfg.frag else xload)(par, j, e, cfg), tl))
            def sg(j=j, ts=ts):
                for x in staging(par, j): self.add(at(x, ts, cfg.stgd))
            self.event(tl, ld)
            if not cfg.frag: self.event(ts, sg)
    def plan_xpf(self):
        cfg = self.cfg
        for (n, j0, cnt, t0, dt) in cfg.xpf:
            for i in range(cnt):
                j = j0 + i; t = t0 + i * dt; tb, m = XPAIRS[j]
                def pf(n=n, tb=tb, m=m, t=t):
                    self.add(at(Op("s_add_u32 s18, s%d, %d" % (sWIN, n * (DELTA if cfg.amap == 0 else 2 * 1572864) + 2 * tb * ROWB), 'salu', S(sWIN), S(18)), t - 2))
                    for e in range(2):
                        self.add(at(Op("buffer_load_dwordx4 v[16:19], v%d, s[%d:%d], s18 offen offset:%d%s" % (vLDE[e], sX, sX + 3, 128 * m, cfg.xpflag), 'vld',
                                       V(vLDE[e]) + S(sX, 4) + S(18), [('dummy', n, tb, m, e)]), t + e))
                self.event(t - 2, pf)
    def plan_hops(self):
        cfg = self.cfg
        ts = list(range(cfg.hop // 2, 4 * NM, cfg.hop))
        for k, t in enumerate(ts):
            def h(k=k, t=t):
                self.add(at(Op("s_cbranch_execz L_hop%d" % (k + 1), 'salu', [], [], tag="@HOP%d" % k), t, 30))
            self.event(t, h)
        self.nhop = len(ts)
    def plan_pf(self):
        cfg = self.cfg
        for n in range(1, 4):
            t = (n - 1) * NM + cfg.pft
            def pf(n=n, t=t):
                self.add(at(Op("s_add_u32 s42, s17, L_win%d-L_pc_ref" % n, 'salu', S(17), S(42)), t - 2))
                self.add(at(Op("buffer_load_dword v8, v7, s[44:47], s42 offen", 'vld', V(7) + S(44, 4) + S(42), [('dummy', n)]), t))
            self.event(t, pf)
    def plan_head(self):
        cfg = self.cfg
        pubs = [(cfg.fm[0], 0, 12, vMK[0]), (cfg.fm[1], 0, 0, vMK[1]), (cfg.f1[0], 1, 24, vMK[0]), (cfg.f1[1], 1, 12, vMK[1]), (cfg.f1[2], 1, 0, vMK[2])]
        self.pubs = pubs
        for k, (tau, w, c, v) in enumerate(pubs):
            o = Op("s_cmp_eq_u32 s49, %d\n    s_cbranch_scc0 L_pub%d\n    s_waitcnt vmcnt(@%d+%d@)\n    ds_or_b32 v%d, v%d\nL_pub%d:" % (w, k, k, c, vFA, v, k), 'salu',
                   V(vFA) + V(v), [('FS', k)])
            o.cost = 8; self.add(at(o, tau, 4))
        def nload():
            NR = lambda k: 128 + 4 * k if k < 16 else 224 + 4 * (k - 16)
            for k in range(18):
                t = cfg.n0 + k * cfg.nstep
                if k % 4 == 0: self.add(at(Op("s_add_u32 s61, s60, %d" % (k * 1024), 'salu', S(60), S(61)), t - 2))
                o = Op("buffer_load_dwordx4 %s, v1, s[52:55], s61 offen offset:%d%s" % (rtxt('v', NR(k), 4), (k % 4) * 1024, cfg.wflag), 'vld',
                       V(1) + S(52, 4) + S(61) + [('BAR', 0)], V(NR(k), 4))
                o.lat = cfg.nlat * P; self.add(at(o, t))
            for k in range(18):
                for h in range(2):
                    self.add(at(Op("ds_write_b64 v%d, %s offset:%d" % (vNW, rtxt('v', NR(k) + 2 * h, 2), k * 1024 + 8 * h), 'dsw2',
                                   V(vNW) + V(NR(k) + 2 * h, 2), ['NW%d%d' % (k, h)]), cfg.n0 + k * cfg.nstep + cfg.nlat, 40))
            self.add(at(Op("ds_or_b32 v%d, v%d" % (vFA, vNB), 'dsw2', V(vFA) + V(vNB) + ['NW%d%d' % (k, h) for k in range(18) for h in range(2)], [('FS', 5)]),
                        cfg.n0 + 17 * cfg.nstep + cfg.nlat, 50))
        self.event(1, nload)
    def build(self):
        cfg = self.cfg
        self.plan_head()
        if cfg.pft: self.plan_pf()
        self.plan_xpf()
        if cfg.hop: self.plan_hops()
        for n in range(1, 4): self.plan_x(n)
        ALL = [0, 1, 2, 3]; SETS = [64, 80, 96, 112]
        for n in range(4):
            self.n = n; self.par = n & 1; self.marks[n] = self.nm
            self.event(n * NM + (400 if cfg.mode[n] == 's' else 600), lambda n=n: self.rows(sST(n & 1), n))
            if cfg.mode[n] == 's':
                for cb in range(12): self.g1(cb, [0, 1])
                for cb in range(12): self.g1(cb, [2, 3])
                for cb in range(4): self.g2(cb)
                self.g4(0, [0, 1], [192, 208])
                for cb in (4, 5): self.g2(cb)
                self.g4(0, [2, 3], [64, 80])
                for cb in (6, 7): self.g2(cb)
                self.g4(1, ALL, [64, 80, 192, 208])
                for cb in range(8, 12): self.g2(cb)
                self.g4(2, ALL, SETS)
            elif cfg.mode[n] == 'a':
                for cb in range(12): self.g1(cb, [0, 1])
                for cb in range(12): self.g1(cb, [2, 3])
                for cb in range(12): self.g2(cb)
                for m in range(3): self.g4(m, ALL, SETS)
            else:
                for cb in range(12): self.g1(cb, ALL)
                for cb in range(12): self.g2(cb)
                for m in range(3): self.g4(m, ALL, SETS)
            assert self.nm == (n + 1) * NM
        assert not self.ev, self.ev
        return self.ops

def build_all(cfg):
    global YB0
    YB0 = 192 if cfg.g3c else 208
    dry = Builder(cfg); dry.build()
    use = []
    for q, (k, first) in enumerate(zip(dry.wseq, dry.wfirst)):
        emi = first - cfg.wlead
        if cfg.chain:
            s_ = k % 6; emi = first - s_ - cfg.wlead + cfg.wsp * s_
            if q >= 16: emi = max(emi, dry.wlast[q - 16] + 1)
        if use: emi = max(emi, use[-1][2])
        assert q < 16 or dry.wlast[q - 16] < emi <= first - 8, (q, dry.wlast[q - 16], emi, first)
        use.append((k, first, emi))
    b = Builder(cfg, use)
    return b.build(), b

def raw_setup(a):
    a("""    s_cmp_ge_u32 s60, 36
    s_cselect_b32 s65, 36, 0
    s_cselect_b32 s97, 768, 0
    s_sub_u32 s65, s60, s65           ; t
    s_mul_i32 s66, s65, 43
    s_lshr_b32 s66, s66, 8            ; u = t / 6
    s_mul_i32 s67, s66, 6
    s_sub_u32 s67, s65, s67           ; s
    s_max_u32 s64, s49, 1
    s_mul_i32 s64, s64, 12288
    s_mul_i32 s61, s66, 36864
    s_add_u32 s61, s61, 384
    s_mul_i32 s62, s67, 36864
    s_add_u32 s62, s62, s97
    s_bitcmp1_b32 s63, 1
    s_cselect_b32 s61, s62, s61
    s_cselect_b32 s64, 0, s64
    s_cselect_b32 s97, 0, s97
    s_movk_i32 s62, 128
    s_movk_i32 s65, 9216
    s_mov_b32 s96, 32
    v_lshrrev_b32 v16, 3, v0
    v_and_b32 v17, 7, v0
    v_bfe_u32 v18, v0, 4, 1
    v_xor_b32 v17, v17, v18
    v_lshlrev_b32 v17, 4, v17
    v_mul_u32_u24 v16, 1152, v16
    s_cmp_eq_u32 s97, 0
    s_mov_b32 s18, 221184
    s_cbranch_scc1 L_raw_rows
    s_mov_b32 s18, 73728
    s_lshl_b32 s61, s66, 6
    s_movk_i32 s62, 6144
    s_movk_i32 s65, 18432
    s_mov_b32 s96, 0
    v_lshrrev_b32 v16, 2, v0
    v_mul_u32_u24 v16, 384, v16
    v_and_b32 v17, 3, v0
    v_lshlrev_b32 v17, 4, v17
L_raw_rows:""")
def raw_issue(a):
    a("""    s_cmp_eq_u32 s97, 0
    s_cselect_b32 s16, s6, s20
    s_cselect_b32 s17, s7, s21
    s_mov_b32 s19, 0x00020000
    s_mov_b32 m0, s64
    s_mov_b32 s97, 4
L_raw_lp:
    v_add_u32 v18, v16, v17
    s_add_u32 s42, s61, s62
    buffer_load_dwordx4 v18, s[16:19], s61 offen lds
    s_add_u32 m0, m0, 1024
    s_add_u32 s41, s42, s62
    buffer_load_dwordx4 v18, s[16:19], s42 offen lds
    s_add_u32 m0, m0, 1024
    s_add_u32 s61, s61, s65
    buffer_load_dwordx4 v18, s[16:19], s41 offen lds
    s_add_u32 m0, m0, 1024
    s_and_b32 s42, s97, 1
    s_mul_i32 s42, s42, s96
    s_lshl_b32 s42, s42, 1
    s_add_u32 s42, s42, s96
    v_xor_b32 v17, s42, v17
    s_sub_u32 s97, s97, 1
    s_cmp_lg_u32 s97, 0
    s_cbranch_scc1 L_raw_lp""")

def produce(a, cfg, waitA):
    a("""    s_mul_i32 s61, s66, 12
    s_add_u32 s61, s61, s67
    s_lshl_b32 s61, s61, 10           ; fragment (2u)*6 + s
    s_add_u32 s62, s61, 6144
    v_mov_b32 v27, v1
    v_bfe_u32 v22, v0, 2, 2           ; i >> 2
    v_and_b32 v23, 3, v0              ; i & 3
    v_lshrrev_b32 v26, 4, v0          ; g
    s_cmp_ge_u32 s60, 36
    s_cbranch_scc0 L_prod_A
    v_mul_u32_u24 v27, 6144, v23
    v_lshlrev_b32 v24, 8, v26
    v_lshlrev_b32 v25, 4, v22
    v_add3_u32 v27, v27, v24, v25
    s_lshr_b32 s61, s66, 1
    s_mul_i32 s61, s61, 24576
    s_and_b32 s62, s66, 1
    s_lshl_b32 s62, s62, 7
    s_add_u32 s61, s61, s62
    s_lshl_b32 s62, s67, 10
    s_add_u32 s61, s61, s62
    s_add_u32 s61, s61, 73728
    s_add_u32 s62, s61, 64
L_prod_A:
    v_mul_u32_u24 v24, 3072, v22
    v_lshl_add_u32 v24, v23, 7, v24
    v_bfe_u32 v25, v0, 1, 1
    v_lshl_add_u32 v25, v22, 1, v25   ; swizzle
    v_xor_b32 v25, v25, v26
    v_lshl_add_u32 v24, v25, 4, v24
    v_xor_b32 v25, 64, v24
    v_lshl_add_u32 v26, v26, 3, v22
    v_lshlrev_b32 v26, 6, v26
    v_lshl_add_u32 v26, v23, 3, v26
    v_add_u32 v26, s64, v26
    s_waitcnt vmcnt(0)""")
    waitA()
    if cfg.stamp: a("    s_memtime s[72:73]")
    def frags(base):
        for km in range(6):
            for t in range(2):
                d = base + 24 * t + 4 * km
                a("    ds_read_b128 v[%d:%d], v%d offset:%d" % (d, d + 3, 24 + (km & 1), (km >> 1) * 1024 + t * 512))
    frags(32)
    a("""    s_cmp_ge_u32 s60, 36
    s_cbranch_scc1 L_prod_N2
    v_add_u32 v24, s64, v24
    v_add_u32 v25, s64, v25""")
    frags(80)
    a("    s_branch L_prod_mm\nL_prod_N2:")
    for km in range(6):
        for h in range(2):
            for q in range(2):
                d = 80 + 24 * h + 4 * km + 2 * q
                a("    ds_read_b64_tr_b16 v[%d:%d], v26 offset:%d" % (d, d + 1, (32 * km + 4 * q) * 64 + 32 * h))
    a("""L_prod_mm:
    s_cmp_ge_u32 s60, 36
    s_cselect_b32 s65, 1.0, s%d       ; scale * log2(e) goes into M
    s_waitcnt lgkmcnt(0)""" % sKAP)
    for h in range(2):
        for km in range(6):
            for t in range(2):
                d = 128 + 8 * h + 4 * t
                c = "0" if km == 0 else "v[%d:%d]" % (d, d + 3)
                a("    v_mfma_f32_16x16x32_bf16 v[%d:%d], v[%d:%d], v[%d:%d], %s" % (d, d + 3, 32 + 24 * t + 4 * km, 35 + 24 * t + 4 * km, 80 + 24 * h + 4 * km, 83 + 24 * h + 4 * km, c))
    for h in range(2):
        if h == 1: a("    s_nop 7")
        if cfg.fold:
            for j in range(8): a("    v_mul_f32 v%d, s65, v%d" % (128 + 8 * h + j, 128 + 8 * h + j))
        for j in range(4):
            a("    v_cvt_pk_bf16_f32 v%d, v%d, v%d" % (144 + 4 * h + j, 128 + 8 * h + 2 * j, 129 + 8 * h + 2 * j))
        a("    buffer_store_dwordx4 v[%d:%d], v27, s[52:55], s%d offen" % (144 + 4 * h, 147 + 4 * h, 61 + h))

GUARD = "    s_sub_u32 s43, s43, 1\n    s_cbranch_scc1 L_end"
def prologue_roles(a, cfg):
    def setbit(v): a("    ds_or_b32 v%d, v%d" % (vFA, v))
    def setimm(bit):
        a("    v_mov_b32 v%d, %d" % (vFL, 1 << bit)); setbit(vFL)
    def waitmask(lab, sreg):
        a(lab + ":")
        a(GUARD)
        a("    ds_read_b32 v%d, v%d" % (vFL, vFA))
        a("    s_waitcnt lgkmcnt(0)")
        a("    v_readfirstlane_b32 s%d, v%d" % (sFL, vFL))
        a("    s_nop 1")
        a("    s_and_b32 s42, s%d, %s" % (sFL, sreg))
        a("    s_cmp_eq_u32 s42, %s" % sreg)
        a("    s_cbranch_scc0 %s" % lab)
    def wdma(n, first=0):
        for q in range(3 * first, 3 * (first + n)):
            a("    s_add_u32 s61, s60, %d" % (q * 4096))
            a("    s_mov_b32 m0, s61")
            a("    s_nop 0")
            for j in range(4):
                a("    buffer_load_dwordx4 v1, s[52:55], s61 offen offset:%d%s lds" % (j * 1024, cfg.wflag))
    xl = [xload(0, j, e, cfg).text for j in range(12) for e in range(2)]
    def land(nblk, younger0=0):
        younger = younger0
        for k in range(24):
            if k == cfg.pace or k % 2 == 1: a("    s_waitcnt vmcnt(%d)" % (23 - k + younger))
            if k == cfg.pace: setbit(31)
            if k % 2 == 1:
                for o in staging(0, k // 2): a("    " + o.text)
            if k % 4 == 3 and k // 4 < nblk: wdma(1, k // 4); younger += 12
    def arrive(lab):
        if cfg.stamp: a("    s_memtime s[92:93]")
        a("""    v_mov_b32 v32, 1
    s_lshr_b32 s60, s2, 3
    s_add_u32 s60, s60, s%d
    v_mov_b32 v33, s60
    s_mov_b64 exec, 1
    ds_add_rtn_u32 v34, v%d, v32 offset:4
    s_waitcnt lgkmcnt(0)
    v_readfirstlane_b32 s61, v34
    s_nop 1
    s_cmp_eq_u32 s61, 2
    s_cbranch_scc0 %s
    buffer_store_byte v32, v33, s[56:59], 0 offen
    v_mov_b32 v32, 0x400000
    ds_or_b32 v%d, v32
%s:
    s_mov_b64 exec, -1""" % (sXC, vFA, lab, vFA, lab))
    a("    s_lshl_b32 s42, 4096, s49\n    v_mov_b32 v31, s42")
    a("    s_cmp_eq_u32 s49, 0")
    a("    s_cbranch_scc1 L_w0")
    a("    s_cmp_lt_u32 s2, %d" % (NPROD * 8))
    a("    s_cbranch_scc0 L_noprod")
    a("L_prod:")
    def waitA():
        a("    s_bitcmp1_b32 s63, 0\n    s_cbranch_scc1 L_gotA")
        waitmask("L_wA", "0x100000")
        a("L_gotA:")
    produce(a, cfg, waitA)
    a("    s_bitcmp1_b32 s63, 0\n    s_cbranch_scc1 L_fb_next")
    a("    s_cmp_eq_u32 s49, 1")
    a("    s_cbranch_scc0 L_p23")
    if cfg.stamp: a("    s_memtime s[94:95]")
    for l in xl: a("    " + l)
    a("    s_waitcnt vmcnt(24)")
    arrive("L_nl1")
    land(0)
    a("    s_branch L_w1go")
    a("L_p23:")
    a("    s_waitcnt vmcnt(0)")
    arrive("L_nl2")
    a("L_noprod:")
    a("    s_lshl_b32 s60, 2048, s49")
    if cfg.gate:
        a("    s_cmp_lt_u32 s2, %d\n    s_cselect_b32 s61, 0x400000, 0    ; this workgroup's flag byte is on its way\n    s_or_b32 s60, s60, s61" % (NPROD * 8))
    if cfg.quiet:
        a("    s_cmp_ge_u32 s49, %d\n    s_cselect_b32 s61, 0x200000, 0\n    s_or_b32 s60, s60, s61" % cfg.quiet)
    waitmask("L_wpace", "s60")
    if cfg.stamp: a("    s_memtime s[94:95]")
    for l in xl: a("    " + l)
    land(0)
    a("L_w1go:")
    if cfg.stamp: a("    s_memtime s[90:91]")
    if cfg.hop:
        a("    s_cmp_eq_u32 s49, %d\n    s_cbranch_scc0 L_nohop\n    s_mov_b64 exec, 0\n    s_branch L_hop0\nL_nohop:" % cfg.hopw)
    a("    s_cmp_eq_u32 s49, 1")
    a("    s_cbranch_scc0 L_enter")
    waitmask("L_wgo", "0x200000")
    if cfg.stamp: a("    s_memtime s[88:89]")
    a("    s_mov_b32 s60, 36864")
    wdma(3)
    a("    v_mov_b32 v%d, 8\n    v_mov_b32 v%d, 16\n    v_mov_b32 v%d, 32" % tuple(vMK))
    a("    s_branch L_enter")
    a("L_w0:")
    if cfg.stamp: a("    s_memtime s[94:95]")
    a("    s_waitcnt vmcnt(24)"); setimm(20)
    land(0)
    if cfg.stamp: a("    s_memtime s[90:91]")
    a("""L_poll0:
    s_mov_b32 s61, 0
    v_min_u32 v33, 5, v0
    v_lshlrev_b32 v33, 2, v33
    s_mov_b32 s62, 0x01010101
    v_mov_b32 v34, 0
L_poll:
    buffer_load_dword v34, v33, s[56:59], s%d offen%s      ; samples return in order; each flag byte only ever goes 0 -> 1
    s_add_u32 s61, s61, 1
    s_sleep %d
    v_cmp_ne_u32 vcc, s62, v34
    s_nop 4
    s_cbranch_vccz L_go
    s_cmp_lt_u32 s61, %d
    s_cbranch_scc1 L_poll
    s_waitcnt vmcnt(0)
    s_branch L_fb
L_go:""" % (sXC, cfg.pollflag, cfg.psleep, cfg.polls))
    if cfg.stamp: a("    s_memtime s[88:89]")
    a("    s_mov_b32 s60, 0")
    wdma(1)
    setimm(21)
    if cfg.m0first: a("    s_waitcnt vmcnt(0)"); setimm(0)
    wdma(2, 1)
    a("    v_mov_b32 v%d, 2\n    v_mov_b32 v%d, 4" % (vMK[0], vMK[1]))
    if not cfg.m0first: a("    s_waitcnt vmcnt(24)"); setimm(0)
    a("L_enter:")
    a("    s_mul_i32 s60, s49, 18432\n    s_add_u32 s60, s60, 73728\n    v_add_u32 v%d, s60, v1\n    s_lshl_b32 s61, 64, s49\n    v_mov_b32 v%d, s61" % (vNW, vNB))
    a("    s_waitcnt lgkmcnt(0)")

def fallback(a):
    a("""L_fb:
    s_mov_b32 s60, 0
    s_cmp_lt_u32 s2, %d               ; the sibling waves must be done with the LDS scratch
    s_cbranch_scc0 L_fb_task
L_fbw:
%s
    ds_read_b32 v34, v%d offset:4
    s_waitcnt lgkmcnt(0)
    v_readfirstlane_b32 s61, v34
    s_nop 1
    s_cmp_eq_u32 s61, 3
    s_cbranch_scc0 L_fbw
L_fb_task:
    s_mov_b32 s63, 3
    s_branch L_raw
L_fb_raw:
    s_bitcmp1_b32 s63, 1
    s_mov_b32 s63, 1
    s_cbranch_scc1 L_raw
    s_branch L_prod
L_fb_next:
    s_waitcnt vmcnt(0)
    s_add_u32 s60, s60, 1
    s_cmp_lt_u32 s60, %d
    s_cbranch_scc1 L_fb_task
    s_branch L_go""" % (NPROD * 8, GUARD, vFA, NTASK))

def slow_paths(a):
    for key in range(7):
        a("L_slow%d:" % key)
        a(GUARD)
        a("    ds_read_b32 v%d, v%d" % (vFL, vFA))
        a("    s_waitcnt lgkmcnt(0)")
        a("    v_readfirstlane_b32 s%d, v%d" % (sFL, vFL))
        a("    s_nop 1")
        a("    s_andn2_b32 s%d, %d, s%d" % (sFL, (1 << key) if key < 6 else 0x3c0, sFL))
        a("    s_cbranch_scc1 L_slow%d" % key)
        a("    s_branch L_ok%d" % key)

SCHED = dict(mfma_period=P, dsw_gap=56, vst1_gap=24, short=True)

def main_kernel(cfg):
    L = []
    a = L.append
    K = NAME + "_kernel"
    a(".globl %s\n.p2align 8\n.type %s,@function\n%s:" % (K, K, K))
    a("""    s_cmp_ge_u32 s2, 256
    s_cbranch_scc1 L_end""")
    if cfg.stamp: a("    s_memtime s[100:101]\n    s_memrealtime s[70:71]")
    a("""    s_load_dwordx4 s[4:7], s[0:1], 0        ; x, wqkv
    s_load_dwordx4 s[20:23], s[0:1], 16     ; wo, out
    s_load_dwordx4 s[56:59], s[0:1], 32     ; debug, ws
    v_lshrrev_b32 v16, 6, v0
    v_and_b32 v0, 63, v0
    s_getpc_b64 s[44:45]
L_pc_ref:
    v_readfirstlane_b32 s49, v16            ; wave
    s_mov_b32 s46, L_code_end-L_pc_ref
    s_mov_b32 s47, 0x00020000
    v_lshlrev_b32 v7, 6, v0
    s_lshr_b32 s60, s2, 3                   ; rank of this workgroup among those dealt to one die
    s_and_b32 s42, s60, 3
    s_lshl_b32 s42, s42, 2
    s_add_u32 s42, s42, s49
    s_lshl_b32 s42, s42, 12
    buffer_load_dword v8, v7, s[44:47], s42 offen
    s_cmp_lt_u32 s60, %d
    s_cbranch_scc0 L_setup
    s_cmp_ge_u32 s60, 12
    s_cselect_b32 s61, 12, 0
    s_cselect_b32 s62, 36, 0
    s_sub_u32 s61, s60, s61                 ; r
    s_and_b32 s64, s61, 1
    s_mul_i32 s64, s64, 3
    s_max_u32 s65, s49, 1
    s_add_u32 s64, s64, s65
    s_sub_u32 s64, s64, 1                   ; u
    s_mul_i32 s64, s64, 6
    s_lshr_b32 s61, s61, 1                  ; s
    s_add_u32 s60, s64, s61
    s_add_u32 s60, s60, s62                 ; task
    s_cmp_eq_u32 s49, 0
    s_cselect_b32 s63, 2, 0
L_raw:""" % NPROD)
    raw_setup(a)
    if cfg.stamp: a("    s_memtime s[72:73]")
    a("    s_waitcnt lgkmcnt(0)")
    if cfg.stamp: a("    s_memtime s[92:93]")
    raw_issue(a)
    a("    s_bitcmp1_b32 s63, 0\n    s_cbranch_scc1 L_fb_raw")
    if cfg.stamp: a("    s_memtime s[98:99]")
    a("""L_setup:
    s_mov_b32 s43, 0x400000
    v_lshlrev_b32 v1, 4, v0                 ; lane*16
    v_add_u32 v2, 0x10000, v1
    v_add_u32 v3, 0x20000, v1
    v_lshrrev_b32 v16, 3, v0
    v_and_b32 v17, 7, v0
    v_lshrrev_b32 v18, 4, v0
    v_xor_b32 v17, v17, v18
    v_lshlrev_b32 v17, 4, v17
    v_mul_u32_u24 v16, 384, v16
    v_add_u32 v9, v16, v17
    v_xor_b32 v10, 64, v9
    v_add_u32 v10, 196608, v10
    s_lshl_b32 s52, s49, 11
    s_add_u32 s52, s52, 147456
    v_lshlrev_b32 v16, 3, v0
    v_add_u32 v4, s52, v16
    v_and_b32 v16, 15, v0                   ; i
    v_lshrrev_b32 v17, 4, v0                ; g
    v_lshrrev_b32 v18, 1, v16
    v_xor_b32 v18, v18, v17
    v_lshlrev_b32 v18, 3, v18
    v_lshl_add_u32 v18, v16, 6, v18
    v_add_u32 v5, s52, v18
    v_xor_b32 v6, 32, v5
    v_lshrrev_b32 v16, 5, v0                ; g>>1
    v_mul_u32_u24 v16, 196608, v16
    v_lshrrev_b32 v17, 4, v0
    v_and_b32 v17, 1, v17
    v_mul_u32_u24 v17, 1536, v17
    v_and_b32 v18, 15, v0
    v_lshlrev_b32 v18, 3, v18
    v_add3_u32 v11, v16, v17, v18
    s_nop 0""")
    if cfg.amap == 0:
        a("    s_lshr_b32 s53, s2, 4\n    s_and_b32 s54, s2, 15")
    else:
        a("    s_and_b32 s53, s2, 7\n    s_lshl_b32 s53, s53, 3\n    s_lshr_b32 s54, s2, 7\n    s_add_u32 s53, s53, s54\n    s_lshr_b32 s54, s2, 3\n    s_and_b32 s54, s54, 15")
    a("""    s_mul_i32 s53, s53, 1572864
    s_lshl_b32 s54, s54, 2
    s_add_u32 s54, s54, s49
    s_mul_i32 s54, s54, 3072
    s_add_u32 s53, s53, s54""")
    for rho in range(0, 8, 2):
        a("    s_add_u32 s%d, s53, %d" % (sLD + rho, rho * ROWB))
    a("    v_mov_b32 v%d, %d\n    v_mov_b32 v30, 0\n    v_mov_b32 v31, 0\n    ds_write_b64 v%d, v[30:31]" % (vFA, FLAG, vFA))
    a("    s_getreg_b32 s%d, hwreg(HW_REG_XCC_ID, 0, 3)" % sXC)
    a("    s_waitcnt lgkmcnt(0)")
    a("    s_mov_b32 s8, s4\n    s_mov_b32 s9, s5\n    s_mov_b32 s10, %d\n    s_mov_b32 s11, 0x00020000" % XBYTES)
    if not cfg.x0pre: a("    s_barrier")
    a("    s_cmp_eq_u32 s49, 0\n    s_cbranch_scc0 L_nox0")
    for j in range(12):
        for e in range(2): a("    " + xload(0, j, e, cfg).text)
    a("L_nox0:")
    if cfg.x0pre: a("    s_barrier")
    a("    s_mov_b32 s3, s53") if not cfg.stamp else a("    s_mov_b32 s99, s53")
    a("    s_mov_b32 s12, s22\n    s_mov_b32 s13, s23\n    s_mov_b32 s14, %d\n    s_mov_b32 s15, 0x00020000" % XBYTES)
    a("    s_mov_b32 s%d, %s" % (sKAP, f32hex(KAPPA)))
    a("    s_mov_b32 s50, s58\n    s_mov_b32 s51, s59")
    a("    s_mov_b32 s58, 256\n    s_mov_b32 s59, 0x00020000")
    if cfg.stamp:
        a("    s_mov_b64 s[22:23], s[70:71]\n    s_mov_b32 s3, s98")
        a("    s_add_u32 s68, s50, 0x300000\n    s_addc_u32 s69, s51, 0\n    s_mov_b32 s70, 0x200000\n    s_mov_b32 s71, 0x00020000")
        a("    s_lshl_b32 s98, s2, 2\n    s_add_u32 s98, s98, s49\n    s_lshl_b32 s98, s98, 7")
    a("    s_mul_i32 s52, s%d, %d\n    s_add_u32 s52, s50, s52\n    s_addc_u32 s53, s51, 0\n    s_mov_b32 s54, %d\n    s_mov_b32 s55, 0x00020000" % (sXC, WIMG, WIMG))
    a("    s_lshl_b32 s%d, s%d, 5" % (sXC, sXC))
    prologue_roles(a, cfg)
    a("    s_mov_b32 s%d, s%d" % (sWIN, 99 if cfg.stamp else 3))
    a("    s_lshl_b32 s17, s49, 12")
    if cfg.frag:
        a("    v_and_b32 v16, 15, v0\n    v_lshrrev_b32 v17, 3, v16\n    v_mul_u32_u24 v17, 196608, v17\n    v_and_b32 v18, 7, v16\n    v_mul_u32_u24 v18, 384, v18")
        a("    v_lshrrev_b32 v16, 4, v0\n    v_lshlrev_b32 v16, 4, v16\n    v_add3_u32 v31, v16, v17, v18")
    ops, B = build_all(cfg)
    order, stats = schedule(ops, **SCHED)
    mt = [o.t for o in order if o.kind == 'mfma']
    sys.stderr.write("schedule: %s windows start at %s last mfma %d\n" % ({k: v for k, v in stats.items() if k != 'late'}, [mt[n * NM] for n in range(4)], mt[-1]))
    lines = finalize(order, State(), exact=True)
    import re as _re
    nv = 0; out = []
    for l in lines:
        m = _re.search(r"@(\d+)\+(\d+)@", l)
        if m: l = l.replace(m.group(0), str(min(63, int(m.group(2)) + nv)))
        if "buffer_" in l: nv += 1
        m = _re.search(r"; @HOP(\d+)", l)
        if m: out.append("L_hop%s:" % m.group(1))
        out.append(l)
    lines = []; n = 0
    for l in out:
        if "v_mfma" in l:
            if n % NM == 0: lines.append("L_win%d:" % (n // NM))
            n += 1
        lines.append(l)
    txt = "\n".join(lines)
    assert all(txt.index("L_pub%d:" % k) < txt.index("L_slow%d" % b) for k, b in enumerate(PUBB)) and txt.index("ds_or_b32 v%d, v%d" % (vFA, vNB)) < txt.index("L_slow6")
    if cfg.stamp:
        marks = {0: 74, 48: 76, 112: 78, 176: 80, 240: 82, 304: 84}
        hl = []; n = 0
        def itstamp(slot):
            hl.append("    s_memtime s[62:63]\n    s_waitcnt lgkmcnt(0)\n    v_mov_b32 v26, s62\n    v_mov_b32 v27, s63\n    v_mov_b32 v28, s98\n    s_mov_b64 exec, 1")
            hl.append("    buffer_store_dwordx2 v[26:27], v28, s[68:71], 0 offen offset:%d\n    s_mov_b64 exec, -1" % (8 * slot))
        for l in lines:
            if "v_mfma" in l:
                if n in marks: hl.append("    s_memtime s[%d:%d]" % (marks[n], marks[n] + 1))
                if n == 368:
                    hl.append("    s_memtime s[86:87]\n    s_waitcnt lgkmcnt(0)\n    s_add_u32 s66, s98, 0x40000\n    v_mov_b32 v17, s66\n    s_mov_b64 exec, 1")
                    for i in range(13):
                        hl.append("    v_mov_b32 v18, s%d\n    buffer_store_dword v18, v17, s[68:71], 0 offen offset:%d" % (72 + 2 * i if i < 12 else 3, 4 * i))
                    hl.append("    v_mov_b32 v17, s98\n    v_mov_b32 v18, s100\n    v_mov_b32 v19, s101\n    buffer_store_dwordx2 v[18:19], v17, s[68:71], 0 offen")
                    hl.append("    v_mov_b32 v18, s22\n    v_mov_b32 v19, s23\n    buffer_store_dwordx2 v[18:19], v17, s[68:71], 0 offen offset:64\n    s_mov_b64 exec, -1")
                    itstamp(1); itstamp(2)
                if cfg.probe is not None and n >= cfg.probe and (n - cfg.probe) % cfg.pstep == 0 and (n - cfg.probe) // cfg.pstep < 13:
                    k = (n - cfg.probe) // cfg.pstep; hl.append("    s_memtime s[%d:%d]" % (72 + 2 * k, 73 + 2 * k))
                for slot, idx in ((3, 368 + NM), (4, 368 + 2 * NM), (5, 368 + 3 * NM), (6, 672 + 3 * NM)):
                    if n == idx: itstamp(slot)
                n += 1
            hl.append(l)
        lines = hl
    L += lines
    if cfg.stamp:
        a("    s_waitcnt vmcnt(0)")
        stamp(a, 7); stamp(a, 9, True)
        if cfg.probe is not None:
            a("    s_add_u32 s66, s98, 0x60000\n    v_mov_b32 v17, s66\n    s_mov_b64 exec, 1")
            for i in range(13): a("    v_mov_b32 v18, s%d\n    buffer_store_dword v18, v17, s[68:71], 0 offen offset:%d" % (72 + 2 * i, 4 * i))
            a("    v_mov_b32 v18, s44\n    buffer_store_dword v18, v17, s[68:71], 0 offen offset:52")
            sys.stderr.write("scheduled probe deltas: %s\n" % [mt[min(len(mt) - 1, cfg.probe + cfg.pstep * (k + 1))] - mt[min(len(mt) - 1, cfg.probe + cfg.pstep * k)] for k in range(12)])
    a("L_end:")
    a("    s_endpgm")
    if cfg.hop:
        a("L_hop%d:" % B.nhop)
        a("    s_mov_b64 exec, -1")
        if cfg.stamp: a("    s_memtime s[88:89]")
        a("    s_branch L_enter")
    slow_paths(a)
    fallback(a)
    a("L_code_end:")
    nw = sum(1 for l in lines if 's_waitcnt' in l); nn = sum(1 for l in lines if 's_nop' in l)
    sys.stderr.write("lines=%d waits=%d nops=%d\n" % (len(lines), nw, nn))
    return "\n".join(L) + "\n"

MAIN_DESC = """.amdhsa_kernel %s_kernel
  .amdhsa_next_free_vgpr 512
  .amdhsa_next_free_sgpr 102
  .amdhsa_accum_offset 256
  .amdhsa_group_segment_fixed_size 0
  .amdhsa_kernarg_size 48
  .amdhsa_user_sgpr_count 2
  .amdhsa_user_sgpr_kernarg_segment_ptr 1
  .amdhsa_system_sgpr_workgroup_id_x 1
.end_amdhsa_kernel
""" % NAME

def generate(cfg):
    s = HEADER
    s += "; @launch grid=(256,1,1) block=(256,1,1) lds=163840\n"
    s += '.amdgcn_target "amdgcn-amd-amdhsa--gfx950"\n.text\n'
    s += main_kernel(cfg)
    s += '.section .rodata,"a"\n.p2align 6\n' + MAIN_DESC
    return s

if __name__ == "__main__":
    ap = argparse.ArgumentParser()
    ap.add_argument("-o", default="/code/%s.s" % NAME)
    ap.add_argument("--stamp", action="store_true")
    ap.add_argument("--set", action="append", default=[])
    args = ap.parse_args()
    cfg = Cfg(); cfg.stamp = args.stamp
    for kv in args.set:
        k, v = kv.split("="); setattr(cfg, k, eval(v))
    open(args.o, "w").write(generate(cfg))
```

```python
import sys, struct, math, argparse
sys.path.insert(0, "gen"); sys.path.insert(0, "gen")
from sched import *

NAME = "standalone__swin_window_attn__vision"
DELTA = 25165824
XBYTES = 100663296
ROWB = 196608
WIMG = 147456
KAPPA = (192 ** -0.5) * math.log2(math.e)
NM = 768
P = 16
def f32hex(x): return "0x%08x" % struct.unpack("<I", struct.pack("<f", x))[0]

HEADER = """; Kernarg layout for this problem (48 bytes, ptrs only, base s[0:1]):
"""

vWB = [1, 2, 3]; vSTO = 11
vMX = [12, 13, 14, 15]; vSM = [20, 21, 22, 23]; vTMP = 16
def vS(kb, tb): return 32 + tb * 16 + kb * 4
def vP(tb, v): return 32 + tb * 8 + v * 4
def vACC(h, i): return 96 + h * 16 + i * 4
def vVB(cb, v): return 128 + cb * 8 + v * 4
def vYB(tb, u=1): return (208 if u & 1 else YB0) + tb * 4
YB0 = 208
def vH(m, tb): return (224, 128, 160)[m] + tb * 8
def aXF(par, tb, s): return par * 96 + (tb * 6 + s) * 4
RING = 15
def aWR(q): return 192 + (q % RING) * 4
sX = 8; sOUT = 12; sLD = 24; sKAP = 40
def sST(par): return 32 + par
sWIN = 16

class Cfg:
    ldflag = " nt"; stflag = " sc1"; wflag = ""; wlead = 26; stamp = False
    ldlat = 150; stgd = 24; R = 368; amap = 1; mute = 1; ppass = 1
    ldtA = (676, 732, 788, 844, 900, 956, 1012, 1068, 1124, 1180, 1236, 1292)
    stgA = (60, 110, 160, 580, 600, 620, 640, 660, 680, 700, 720, 740)
    ldtB = (742, 798, 854, 910, 966, 1022, 1078, 1134, 1190, 1246, 1302, 1358)
    stgB = (310, 335, 360, 720, 735, 750, 772, 786, 810, 835, 870, 900)
    sttA = ((48, 750, 10.5),); stmA = (1, 0, 2)
    sttB = ((8, 505, 7), (8, 568, 8), (16, 650, 5), (4, 754, 3), (12, 800, 25))
    hd_x0 = 150; hd_xstep = 22
    n0 = 24; nstep = 6; nlat = 80
    g3c = 1; fold = 1; frag = 0; chain = 1; wsp = 2; wdl = 6; probe = None; l2t = (); l2w = (); l2o = 2048; hop = 128; hopw = 2; pstep = 64; mode = 'nnns'; stt_0 = None; ldt_2 = None; stg_2 = None; xpf = (); xpflag = ""; ab = (); split = 1; pft = 96; pflead = 100; pf0 = 1
    fm = (10, 60); f1 = (30, 80, 130); pace = 3; polls = 400; pollflag = " nt"; psleep = 4; x0pre = 0; m0first = 0; quiet = 0; gate = 1

def stamp(a, idx, rt=False):
    a("    %s s[62:63]" % ("s_memrealtime" if rt else "s_memtime"))
    a("    s_waitcnt lgkmcnt(0)")
    a("    v_mov_b32 v26, s62\n    v_mov_b32 v27, s63\n    v_mov_b32 v28, s98")
    a("    s_mov_b64 exec, 1")
    a("    buffer_store_dwordx2 v[26:27], v28, s[68:71], 0 offen offset:%d" % (idx * 8))
    a("    s_mov_b64 exec, -1")

def mfma(d, a_kind, a, b_kind, b, first, tag=""):
    c = "0" if first else rtxt('v', d, 4)
    cr = [] if first else V(d, 4)
    return Op("v_mfma_f32_16x16x32_bf16 %s, %s, %s, %s" % (rtxt('v', d, 4), rtxt(a_kind, a, 4), rtxt(b_kind, b, 4), c),
              'mfma', reads=regs(a_kind, a, 4) + regs(b_kind, b, 4) + cr, writes=V(d, 4), creads=cr, tag=tag, passes=4)

def wread(q, k, **kw):
    off = k * 1024
    base = vWB[off // 65536]
    return Op("ds_read_b128 %s, v%d offset:%d" % (rtxt('a', aWR(q), 4), base, off % 65536), 'dsr',
              reads=V(base), writes=A(aWR(q), 4), tag="W%d" % k, **kw)

def cvt(dst, s0, s1, **kw):
    return Op("v_cvt_pk_bf16_f32 v%d, v%d, v%d" % (dst, s0, s1), 'valu', reads=V(s0) + V(s1), writes=V(dst), **kw)

XPA = [(tb, m) for tb in range(4) for m in range(3)]
XPB = XPA[:6] + [(tb, m) for m in range(3) for tb in (2, 3)]
XP = (XPA, XPB)
vLDE = [9, 10]; vSTW = 4; vSTR = [5, 6]
def xload(par, j, e, cfg, **kw):
    tb, m = XP[par][j]; d = aXF(par, tb, 2 * m + e)
    o = Op("buffer_load_dwordx4 %s, v%d, s[%d:%d], s%d offen offset:%d%s" %
           (rtxt('a', d, 4), vLDE[e], sX, sX + 3, sLD + 2 * tb, 128 * m, cfg.ldflag), 'vld',
           reads=V(vLDE[e]) + S(sX, 4) + S(sLD + 2 * tb), writes=A(d, 4), **kw)
    o.lat = cfg.ldlat * P
    return o
def staging(par, j, **kw):
    tb, m = XP[par][j]; o = []
    vSTW, vSTR = ((16, [17, 18]), (4, [5, 6]))[par]
    for e in range(2):
        for h in range(2):
            d = aXF(par, tb, 2 * m + e) + 2 * h
            o.append(Op("ds_write_b64 v%d, %s offset:%d" % (vSTW, rtxt('a', d, 2), 1024 * h + 512 * e), 'dsw2',
                        reads=V(vSTW) + A(d, 2), writes=[('STG', e, h)] and ['STG%d%d' % (e, h)], **kw))
    for sp in range(2):
        d = aXF(par, tb, 2 * m + sp)
        o.append(Op("ds_read2_b64 %s, v%d offset0:0 offset1:128" % (rtxt('a', d, 4), vSTR[sp]), 'dsr',
                    reads=V(vSTR[sp]) + ['STG00', 'STG01', 'STG10', 'STG11'], writes=A(d, 4), **kw))
    return o

def vop(text, rd, wr, kind='valu'): return Op(text, kind, rd, wr)

def cross_reduce(o, r, opn, tmp, post):
    a_, b_, c_, d_ = r
    o.append(vop("v_permlane16_swap_b32 v%d, v%d" % (a_, b_), V(a_) + V(b_), V(a_) + V(b_), 'perm'))
    o.append(vop("v_permlane16_swap_b32 v%d, v%d" % (c_, d_), V(c_) + V(d_), V(c_) + V(d_), 'perm'))
    o.append(vop("%s v%d, v%d, v%d" % (opn, a_, a_, b_), V(a_) + V(b_), V(a_)))
    o.append(vop("%s v%d, v%d, v%d" % (opn, c_, c_, d_), V(c_) + V(d_), V(c_)))
    o.append(vop("v_permlane32_swap_b32 v%d, v%d" % (a_, c_), V(a_) + V(c_), V(a_) + V(c_), 'perm'))
    o.append(vop("%s v%d, v%d, v%d" % (opn, a_, a_, c_), V(a_) + V(c_), V(a_)))
    post(a_)
    o.append(vop("v_mov_b32 v%d, v%d" % (c_, a_), V(a_), V(c_)))
    o.append(vop("v_permlane32_swap_b32 v%d, v%d" % (a_, c_), V(a_) + V(c_), V(a_) + V(c_), 'perm'))
    o.append(vop("v_mov_b32 v%d, v%d" % (b_, a_), V(a_), V(b_)))
    o.append(vop("v_mov_b32 v%d, v%d" % (d_, c_), V(c_), V(d_)))
    o.append(vop("v_permlane16_swap_b32 v%d, v%d" % (a_, b_), V(a_) + V(b_), V(a_) + V(b_), 'perm'))
    o.append(vop("v_permlane16_swap_b32 v%d, v%d" % (c_, d_), V(c_) + V(d_), V(c_) + V(d_), 'perm'))

def cross_reduce2(o, r, opn, post):
    a_, b_ = r
    o.append(vop("v_permlane16_swap_b32 v%d, v%d" % (a_, b_), V(a_) + V(b_), V(a_) + V(b_), 'perm'))
    o.append(vop("%s v%d, v%d, v%d" % (opn, a_, a_, b_), V(a_) + V(b_), V(a_)))
    o.append(vop("v_mov_b32 v%d, v%d" % (b_, a_), V(a_), V(b_)))
    o.append(vop("v_permlane32_swap_b32 v%d, v%d" % (a_, b_), V(a_) + V(b_), V(a_) + V(b_), 'perm'))
    o.append(vop("%s v%d, v%d, v%d" % (opn, a_, a_, b_), V(a_) + V(b_), V(a_)))
    post(a_)
    o.append(vop("v_mov_b32 v%d, v%d" % (b_, a_), V(a_), V(b_)))
    o.append(vop("v_permlane16_swap_b32 v%d, v%d" % (a_, b_), V(a_) + V(b_), V(a_) + V(b_), 'perm'))

def softmax(tbs, fold=False):
    o = []
    def red(regs, opn, post):
        if len(tbs) == 4: cross_reduce(o, regs, opn, None, post)
        else: cross_reduce2(o, [regs[t] for t in tbs], opn, post)
    for tb in tbs:
        e = [vS(0, tb) + i for i in range(16)]; m = vMX[tb]
        o.append(vop("v_max3_f32 v%d, v%d, v%d, v%d" % (m, e[0], e[1], e[2]), V(e[0]) + V(e[1]) + V(e[2]), V(m)))
        for i in range(3, 15, 2):
            o.append(vop("v_max3_f32 v%d, v%d, v%d, v%d" % (m, m, e[i], e[i + 1]), V(m) + V(e[i]) + V(e[i + 1]), V(m)))
        o.append(vop("v_max_f32 v%d, v%d, v%d" % (m, m, e[15]), V(m) + V(e[15]), V(m)))
    red(vMX, "v_max_f32", (lambda z: None) if fold else (lambda z: o.append(vop("v_mul_f32 v%d, s%d, v%d" % (z, sKAP, z), V(z) + S(sKAP), V(z)))))
    for tb in tbs:
        e = [vS(0, tb) + i for i in range(16)]; m = vMX[tb]; l = vSM[tb]
        for i in range(16):
            if fold: o.append(vop("v_sub_f32 v%d, v%d, v%d" % (e[i], e[i], m), V(e[i]) + V(m), V(e[i])))
            else: o.append(vop("v_fma_f32 v%d, v%d, s%d, -v%d" % (e[i], e[i], sKAP, m), V(e[i]) + V(m) + S(sKAP), V(e[i])))
            o.append(vop("v_exp_f32 v%d, v%d" % (e[i], e[i]), V(e[i]), V(e[i]), 'trans'))
            if i == 1: o.append(vop("v_add_f32 v%d, v%d, v%d" % (l, e[0], e[1]), V(e[0]) + V(e[1]), V(l)))
            elif i > 1: o.append(vop("v_add_f32 v%d, v%d, v%d" % (l, l, e[i]), V(l) + V(e[i]), V(l)))
    red(vSM, "v_add_f32", lambda z: o.append(vop("v_rcp_f32 v%d, v%d" % (z, z), V(z), V(z), 'trans')))
    for tb in tbs:
        base = vS(0, tb); l = vSM[tb]
        for j in range(8):
            o.append(vop("v_mul_f32 v%d, v%d, v%d" % (base + 2 * j, base + 2 * j, l), V(base + 2 * j) + V(l), V(base + 2 * j)))
            o.append(vop("v_mul_f32 v%d, v%d, v%d" % (base + 2 * j + 1, base + 2 * j + 1, l), V(base + 2 * j + 1) + V(l), V(base + 2 * j + 1)))
            o.append(cvt(vP(tb, 0) + j, base + 2 * j, base + 2 * j + 1))
    return o

FLAG = WIMG + 4 * 2048
vFA = 29; vFL = 30; sFL = 41; vMK = [26, 27, 28]; sXC = 48; NPROD = 24; vNW = 24; vNB = 25
NTASK = 72
PUBB = (1, 2, 3, 4, 5)

def at(o, idx, slack=6):
    o.emi = max(0, idx); o.deadline = max(0, idx + slack) * P; return o

class Builder:
    def __init__(self, cfg, nwin, head, wuse=None):
        self.nwin = nwin; self.head = head; self.own = (0, 'c'); self.cnt = {}
        self.cfg = cfg; self.ops = []; self.nm = 0; self.pending = None
        self.wuse = wuse; self.wseq = []; self.wfirst = []; self.wlast = []; self.nw = 0
        self.ev = []; self.seen = set(); self.marks = {}; self.labels = set()
    def add(self, o, own=None):
        own = own or self.own
        c = self.cnt.get(own, 0); self.cnt[own] = c + 1
        o.grp = own + (c,); self.ops.append(o); return o
    def event(self, idx, fn): self.ev.append((idx, len(self.ev), fn)); self.ev.sort(key=lambda e: e[:2])
    def check(self, key, mask, idx, after):
        cfg = self.cfg
        rd = Op("ds_read_b32 v%d, v%d" % (vFL, vFA), 'dsr', V(vFA) + after, V(vFL), deadline=max(0, idx * P - 200)); rd.emi = max(0, idx - 12)
        rf = Op("v_readfirstlane_b32 s%d, v%d" % (sFL, vFL), 'valu', V(vFL), S(sFL), deadline=idx * P)
        if mask & (mask - 1) == 0:
            br = Op("s_bitcmp1_b32 s%d, %d\n    s_cbranch_scc0 L_slow%d\nL_ok%d:" % (sFL, mask.bit_length() - 1, key, key), 'salu', S(sFL), [('BAR', key)], deadline=idx * P + 16)
        else:
            br = Op("s_andn2_b32 s%d, %d, s%d\n    s_cbranch_scc1 L_slow%d\nL_ok%d:" % (sFL, mask, sFL, key, key), 'salu', S(sFL), [('BAR', key)] + S(sFL), deadline=idx * P + 16)
        br.cost = 8
        for o in (rd, rf, br): self.add(o, (0, 'H'))
    def addm(self, o):
        cfg = self.cfg
        while self.ev and self.ev[0][0] <= self.nm: self.ev.pop(0)[2]()
        if self.wuse is not None:
            while self.nw < len(self.wuse) and self.wuse[self.nw][2] <= self.nm:
                q = self.nw; k, first, emi = self.wuse[q]
                r = wread(q, k, deadline=min(first * P - 150, (emi + cfg.wdl) * P)); r.emi = max(0, emi)
                if self.head and first < NM:
                    key = min(k // 12, 6)
                    if key not in self.seen:
                        self.seen.add(key)
                        self.check(key, (1 << key) if key < 6 else 0x3c0, max(0, emi - 2),
                                   [('FS', j) for j in range(5) if key >= PUBB[j]] + ([('FS', 5)] if key == 6 else []))
                    r.reads.append(('BAR', key))
                if self.head and self.nm == 0 and q < 8: r.writes.append('W0G%d' % q); o.reads.append('W0G%d' % q)
                self.add(r, (first // NM, 'w')); self.nw += 1
        self.nm += 1; return self.add(o)
    def w_new(self, k):
        self.wseq.append(k); self.wfirst.append(self.nm); self.wlast.append(self.nm); return len(self.wseq) - 1
    def run_pending(self):
        if self.pending is not None:
            p = self.pending; self.pending = None; p()
    def g3(self, u, tbs):
        for tb in tbs:
            for kb in range(4):
                for uu in ((u - 1, u) if self.cfg.g3c else (u,)):
                    self.addm(mfma(vS(kb, tb), 'a', aXF(self.par, kb, uu), 'v', vYB(tb, uu), first=(uu == 0), tag="G3 u%d" % uu))
        if u == 5:
            for o in softmax(tbs, self.cfg.fold): self.add(o)
    def g1(self, cb, tbs):
        hh = cb & 1
        if self.cfg.chain:
            qs = {}
            for i, tb in enumerate(tbs):
                for s in range(6):
                    if s not in qs: qs[s] = self.w_new(6 * cb + s)
                    self.wlast[qs[s]] = self.nm
                    self.addm(mfma(vACC(hh, tb), 'a', aWR(qs[s]), 'a', aXF(self.par, tb, s), first=(s == 0), tag="G1 cb%d s%d" % (cb, s)))
                if i == 1: self.run_pending()
        else:
          for s in range(6):
            q = self.w_new(6 * cb + s)
            for tb in tbs:
                self.wlast[q] = self.nm
                self.addm(mfma(vACC(hh, tb), 'a', aWR(q), 'a', aXF(self.par, tb, s), first=(s == 0), tag="G1 cb%d s%d" % (cb, s)))
            if s == (2 if len(tbs) == 4 else 4): self.run_pending()
        for tb in tbs:
            for j in range(2):
                self.add(cvt(vYB(tb, cb // 2) + 2 * hh + j, vACC(hh, tb) + 2 * j, vACC(hh, tb) + 2 * j + 1))
        if hh == 1 and (not self.cfg.g3c or cb % 4 == 3): self.pending = (lambda u=cb // 2: self.g3(u, tbs))
    def g2(self, cb):
        st = cb & 1
        if self.cfg.chain:
            qs = {}
            for kb in range(4):
                for s in range(6):
                    if s not in qs: qs[s] = self.w_new(72 + 6 * cb + s)
                    self.wlast[qs[s]] = self.nm
                    self.addm(mfma(vACC(st, kb), 'a', aXF(self.par, kb, s), 'a', aWR(qs[s]), first=(s == 0), tag="G2 cb%d s%d" % (cb, s)))
                if kb == 1: self.run_pending()
        else:
          for s in range(6):
            q = self.w_new(72 + 6 * cb + s)
            for kb in range(4):
                self.wlast[q] = self.nm
                self.addm(mfma(vACC(st, kb), 'a', aXF(self.par, kb, s), 'a', aWR(q), first=(s == 0), tag="G2 cb%d s%d" % (cb, s)))
            if s == 2: self.run_pending()
        for v in range(2):
            for j in range(4):
                src = vACC(st, 2 * v + j // 2) + 2 * (j % 2)
                self.add(cvt(vVB(cb, v) + j, src, src + 1))
    def g4(self, m, tbs, sets):
        cfg = self.cfg; n = self.n
        for tb, ob in zip(tbs, sets):
            for v, q in ([(v, q) for q in range(4) for v in range(2)] if cfg.chain else [(v, q) for v in range(2) for q in range(4)]):
                    self.addm(mfma(ob + 4 * q, 'v', vP(tb, v), 'v', vVB(4 * m + q, v), first=(v == 0), tag="G4 m%d tb%d" % (m, tb)))
            for r in range(4):
                self.add(cvt(vH(m, tb) + 2 * r, ob + r, ob + 4 + r))
                self.add(cvt(vH(m, tb) + 2 * r + 1, ob + 8 + r, ob + 12 + r))
        stt = [t0 + i * dt for (c, t0, dt) in (cfg.sttB if n & 1 else cfg.sttA) for i in range(c)]
        assert len(stt) == 48
        stm = (0, 1, 2) if n & 1 else cfg.stmA
        for tb in tbs:
            for r in range(4):
                d = vH(m, tb) + 2 * r; row = sST(n & 1) + 2 * tb
                o = Op("buffer_store_dwordx2 %s, v%d, s[%d:%d], s%d offen offset:%d%s" % (rtxt('v', d, 2), vSTO, sOUT, sOUT + 3, row, r * 384 + m * 128, cfg.stflag), 'vst1',
                       reads=V(d, 2) + V(vSTO) + S(sOUT, 4) + S(row))
                self.add(at(o, n * NM + int(stt[16 * stm.index(m) + 4 * tb + r])))
    def rows(self, base, k, own):
        for rho in range(0, 8, 2):
            self.add(Op("s_add_u32 s%d, s%d, %d" % (base + rho, sWIN, k * WSTEP(self.cfg) + rho * ROWB), 'salu', S(sWIN), S(base + rho)), own)
    def plan_x(self, n):
        cfg = self.cfg; par = n & 1
        for j in range(12):
            tl = (n - 2) * NM + (cfg.ldtA, cfg.ldtB)[par][j]
            if n == 1: tl = max(tl, cfg.hd_x0 + j * cfg.hd_xstep) if tl >= cfg.R else cfg.hd_x0 + j * cfg.hd_xstep
            ts = (n - 1) * NM + (cfg.stgA, cfg.stgB)[par][j]
            def ld(j=j, tl=tl):
                if j == 0: self.rows(sLD, 1 if n == 1 else 2 + par, (n, 'r'))
                for e in range(2): self.add(at(xload(par, j, e, cfg), tl), (n, 'l'))
            def sg(j=j, ts=ts):
                for x in staging(par, j): self.add(at(x, ts, cfg.stgd), (n, 's'))
            if tl < self.nwin * NM: self.event(tl, ld)
            if ts < self.nwin * NM: self.event(ts, sg)
    def plan_head(self):
        cfg = self.cfg
        pubs = [(cfg.fm[0], 0, 12, vMK[0]), (cfg.fm[1], 0, 0, vMK[1]), (cfg.f1[0], 1, 24, vMK[0]), (cfg.f1[1], 1, 12, vMK[1]), (cfg.f1[2], 1, 0, vMK[2])]
        self.pubs = pubs
        for k, (tau, w, c, v) in enumerate(pubs):
            o = Op("s_cmp_eq_u32 s49, %d\n    s_cbranch_scc0 L_pub%d\n    s_waitcnt vmcnt(@%d+%d@)\n    ds_or_b32 v%d, v%d\nL_pub%d:" % (w, k, k, c, vFA, v, k), 'salu',
                   V(vFA) + V(v), [('FS', k)])
            o.cost = 8; self.add(at(o, tau, 4), (0, 'H'))
        def nload():
            keep = self.own; self.own = (0, 'H')
            NR = lambda k: 128 + 4 * k if k < 16 else 224 + 4 * (k - 16)
            for k in range(18):
                t = cfg.n0 + k * cfg.nstep
                if k % 4 == 0: self.add(at(Op("s_add_u32 s61, s60, %d" % (k * 1024), 'salu', S(60), S(61)), t - 2))
                o = Op("buffer_load_dwordx4 %s, v1, s[52:55], s61 offen offset:%d%s" % (rtxt('v', NR(k), 4), (k % 4) * 1024, cfg.wflag), 'vld',
                       V(1) + S(52, 4) + S(61) + [('BAR', 0)], V(NR(k), 4))
                o.lat = cfg.nlat * P; self.add(at(o, t))
            for k in range(18):
                for h in range(2):
                    self.add(at(Op("ds_write_b64 v%d, %s offset:%d" % (vNW, rtxt('v', NR(k) + 2 * h, 2), k * 1024 + 8 * h), 'dsw2',
                                   V(vNW) + V(NR(k) + 2 * h, 2), ['NW%d%d' % (k, h)]), cfg.n0 + k * cfg.nstep + cfg.nlat, 40))
            self.add(at(Op("ds_or_b32 v%d, v%d" % (vFA, vNB), 'dsw2', V(vFA) + V(vNB) + ['NW%d%d' % (k, h) for k in range(18) for h in range(2)], [('FS', 5)]),
                        cfg.n0 + 17 * cfg.nstep + cfg.nlat, 50))
            self.own = keep
        self.event(1, nload)
    def build(self):
        cfg = self.cfg
        if self.head: self.plan_head()
        for n in range(1, self.nwin + 2): self.plan_x(n)
        ALL = [0, 1, 2, 3]; SETS = [64, 80, 96, 112]
        for n in range(self.nwin):
            self.n = n; self.par = n & 1; self.own = (n, 'c')
            if n & 1 == 0:
                self.add(Op("s_add_u32 s%d, s%d, %d" % (sWIN, sWIN, 2 * WSTEP(cfg)), 'salu', S(sWIN), S(sWIN)))
                self.event(n * NM + 660, lambda n=n: self.add(at(Op("s_mov_b32 s%d, s19" % (sX + 2), 'salu', S(19), S(sX + 2)), n * NM + 660), (n, 'x')))
            self.event(n * NM + (400 if n & 1 else 600), lambda n=n: self.rows(sST(n & 1), n & 1, (n, 't')))
            if n & 1:
                for cb in range(12): self.g1(cb, [0, 1])
                for cb in range(12): self.g1(cb, [2, 3])
                for cb in range(4): self.g2(cb)
                self.g4(0, [0, 1], [192, 208])
                for cb in (4, 5): self.g2(cb)
                self.g4(0, [2, 3], [64, 80])
                for cb in (6, 7): self.g2(cb)
                self.g4(1, ALL, [64, 80, 192, 208])
                for cb in range(8, 12): self.g2(cb)
                self.g4(2, ALL, SETS)
            else:
                for cb in range(12): self.g1(cb, ALL)
                for cb in range(12): self.g2(cb)
                for m in range(3): self.g4(m, ALL, SETS)
            assert self.nm == (n + 1) * NM
        assert not self.ev, self.ev
        return self.ops

def WSTEP(cfg): return DELTA if cfg.amap == 0 else 2 * 1572864
def build_all(cfg, nwin, head):
    global YB0
    YB0 = 192 if cfg.g3c else 208
    dry = Builder(cfg, nwin + 1, False); dry.build()
    use = []
    for q, (k, first) in enumerate(zip(dry.wseq, dry.wfirst)):
        s_ = k % 6; emi = first - s_ - cfg.wlead + cfg.wsp * s_
        if q >= RING: emi = max(emi, dry.wlast[q - RING] + 1)
        if use: emi = max(emi, use[-1][2])
        assert q < RING or dry.wlast[q - RING] < emi <= first - 8, (q, dry.wlast[q - RING], emi, first)
        use.append((k, first, emi))
    b = Builder(cfg, nwin, head, use)
    return b.build(), b

def cut_at(ops, n):
    c = 0
    for i, o in enumerate(ops):
        if o.kind == 'mfma':
            if c == n: return i
            c += 1
    return len(ops)

def make_stream(cfg):
    R = cfg.R
    ops, B = build_all(cfg, 8, False)
    order, stats = schedule(ops, **SCHED)
    c0, c1, c2 = (cut_at(order, k * NM + R) for k in (2, 4, 6))
    assert [o.text for o in order[c0:c1]] == [o.text for o in order[c1:c2]], "schedule is not periodic"
    body = order[c1:c2]; t0 = body[0].t
    period = order[c2].t - t0
    before = set((o.grp[0] - 4,) + o.grp[1:] for o in order[:c1] if o.grp[0] >= 4 and not (o.grp[0] == 4 and o.grp[1] in 'lrs'))
    ex = cut_at(body, 2 * NM - R)
    tail = [o for o in body[ex:] if o.grp[0] == 5]
    assert all(o.grp[0] >= 5 for o in body[ex:]) and all(o.kind in ('valu', 'vst1') for o in tail), [o.text for o in tail if o.kind not in ('valu', 'vst1')]
    hops, HB = build_all(cfg, 2, True)
    hops = [o for o in hops if o.grp[1] == 'H' or o.grp in before]
    assert len([o for o in hops if o.grp[1] != 'H']) == len(before), (len(hops), len(before))
    horder, hstats = schedule(hops, **SCHED)
    sys.stderr.write("head %s, period %d, tail %d ops\n" % ({k: v for k, v in hstats.items() if k != 'late'}, period, len(tail)))
    for o in body: o.t -= t0
    def clone(o):
        c = Op(o.text, o.kind, o.reads, o.writes, tag=o.tag, creads=o.creads, passes=o.passes); c.grp = o.grp; return c
    tail = [clone(o) for o in tail]
    wr = set(r for o in tail for r in o.writes)
    tail.sort(key=lambda o: 1 if o.kind == 'valu' else (2 if wr & set(o.reads) else 0))
    parts = {1: body[:ex], 2: body[ex:]}
    def run(reqs, collect):
        st = State(); hl = finalize(horder, st, exact=True)
        out = {}; tb = hstats['end']
        for key in (1, 2, 1):
            c = [] if collect is not None else None
            ln = finalize(parts[key], st, tbase=tb, reqs=(reqs.get(key) if reqs else None), collect=c, exact=True)
            if collect is not None: collect.setdefault(key, []).append(c)
            out.setdefault(key, []).append(ln)
            if key == 2: tb += period
        return st, hl, out
    reqs = None
    for it in range(4):
        col = {}; run(reqs, col)
        reqs = {k: (merge_reqs(v[0], v[1]) if len(v) > 1 else v[0]) for k, v in col.items()}
    st, hl, out = run(reqs, None)
    assert out[1][0] == out[1][1], "waits are not stable"
    st.time = 10 ** 9
    tl = finalize(tail, st)
    return hl, out[1][0], out[2][0], tl

def raw_setup(a):
    a("""    s_cmp_ge_u32 s60, 36
    s_cselect_b32 s65, 36, 0
    s_cselect_b32 s97, 768, 0
    s_sub_u32 s65, s60, s65           ; t
    s_mul_i32 s66, s65, 43
    s_lshr_b32 s66, s66, 8            ; u = t / 6
    s_mul_i32 s67, s66, 6
    s_sub_u32 s67, s65, s67           ; s
    s_max_u32 s64, s49, 1
    s_mul_i32 s64, s64, 12288
    s_mul_i32 s61, s66, 36864
    s_add_u32 s61, s61, 384
    s_mul_i32 s62, s67, 36864
    s_add_u32 s62, s62, s97
    s_bitcmp1_b32 s63, 1
    s_cselect_b32 s61, s62, s61
    s_cselect_b32 s64, 0, s64
    s_cselect_b32 s97, 0, s97
    s_movk_i32 s62, 128
    s_movk_i32 s65, 9216
    s_mov_b32 s96, 32
    v_lshrrev_b32 v16, 3, v0
    v_and_b32 v17, 7, v0
    v_bfe_u32 v18, v0, 4, 1
    v_xor_b32 v17, v17, v18
    v_lshlrev_b32 v17, 4, v17
    v_mul_u32_u24 v16, 1152, v16
    s_cmp_eq_u32 s97, 0
    s_mov_b32 s18, 221184
    s_cbranch_scc1 L_raw_rows
    s_mov_b32 s18, 73728
    s_lshl_b32 s61, s66, 6
    s_movk_i32 s62, 6144
    s_movk_i32 s65, 18432
    s_mov_b32 s96, 0
    v_lshrrev_b32 v16, 2, v0
    v_mul_u32_u24 v16, 384, v16
    v_and_b32 v17, 3, v0
    v_lshlrev_b32 v17, 4, v17
L_raw_rows:""")
def raw_issue(a):
    a("""    s_cmp_eq_u32 s97, 0
    s_cselect_b32 s16, s6, s20
    s_cselect_b32 s17, s7, s21
    s_mov_b32 s19, 0x00020000
    s_mov_b32 m0, s64
    s_mov_b32 s97, 4
L_raw_lp:
    v_add_u32 v18, v16, v17
    s_add_u32 s42, s61, s62
    buffer_load_dwordx4 v18, s[16:19], s61 offen lds
    s_add_u32 m0, m0, 1024
    s_add_u32 s41, s42, s62
    buffer_load_dwordx4 v18, s[16:19], s42 offen lds
    s_add_u32 m0, m0, 1024
    s_add_u32 s61, s61, s65
    buffer_load_dwordx4 v18, s[16:19], s41 offen lds
    s_add_u32 m0, m0, 1024
    s_and_b32 s42, s97, 1
    s_mul_i32 s42, s42, s96
    s_lshl_b32 s42, s42, 1
    s_add_u32 s42, s42, s96
    v_xor_b32 v17, s42, v17
    s_sub_u32 s97, s97, 1
    s_cmp_lg_u32 s97, 0
    s_cbranch_scc1 L_raw_lp""")

def produce(a, cfg, waitA):
    a("""    s_mul_i32 s61, s66, 12
    s_add_u32 s61, s61, s67
    s_lshl_b32 s61, s61, 10           ; fragment (2u)*6 + s
    s_add_u32 s62, s61, 6144
    v_mov_b32 v27, v1
    v_bfe_u32 v22, v0, 2, 2           ; i >> 2
    v_and_b32 v23, 3, v0              ; i & 3
    v_lshrrev_b32 v26, 4, v0          ; g
    s_cmp_ge_u32 s60, 36
    s_cbranch_scc0 L_prod_A
    v_mul_u32_u24 v27, 6144, v23
    v_lshlrev_b32 v24, 8, v26
    v_lshlrev_b32 v25, 4, v22
    v_add3_u32 v27, v27, v24, v25
    s_lshr_b32 s61, s66, 1
    s_mul_i32 s61, s61, 24576
    s_and_b32 s62, s66, 1
    s_lshl_b32 s62, s62, 7
    s_add_u32 s61, s61, s62
    s_lshl_b32 s62, s67, 10
    s_add_u32 s61, s61, s62
    s_add_u32 s61, s61, 73728
    s_add_u32 s62, s61, 64
L_prod_A:
    v_mul_u32_u24 v24, 3072, v22
    v_lshl_add_u32 v24, v23, 7, v24
    v_bfe_u32 v25, v0, 1, 1
    v_lshl_add_u32 v25, v22, 1, v25   ; swizzle
    v_xor_b32 v25, v25, v26
    v_lshl_add_u32 v24, v25, 4, v24
    v_xor_b32 v25, 64, v24
    v_lshl_add_u32 v26, v26, 3, v22
    v_lshlrev_b32 v26, 6, v26
    v_lshl_add_u32 v26, v23, 3, v26
    v_add_u32 v26, s64, v26
    s_waitcnt vmcnt(0)""")
    waitA()
    if cfg.stamp: a("    s_memtime s[72:73]")
    def frags(base):
        for km in range(6):
            for t in range(2):
                d = base + 24 * t + 4 * km
                a("    ds_read_b128 v[%d:%d], v%d offset:%d" % (d, d + 3, 24 + (km & 1), (km >> 1) * 1024 + t * 512))
    frags(32)
    a("""    s_cmp_ge_u32 s60, 36
    s_cbranch_scc1 L_prod_N2
    v_add_u32 v24, s64, v24
    v_add_u32 v25, s64, v25""")
    frags(80)
    a("    s_branch L_prod_mm\nL_prod_N2:")
    for km in range(6):
        for h in range(2):
            for q in range(2):
                d = 80 + 24 * h + 4 * km + 2 * q
                a("    ds_read_b64_tr_b16 v[%d:%d], v26 offset:%d" % (d, d + 1, (32 * km + 4 * q) * 64 + 32 * h))
    a("""L_prod_mm:
    s_cmp_ge_u32 s60, 36
    s_cselect_b32 s65, 1.0, s%d       ; scale * log2(e) goes into M
    s_waitcnt lgkmcnt(0)""" % sKAP)
    for h in range(2):
        for km in range(6):
            for t in range(2):
                d = 128 + 8 * h + 4 * t
                c = "0" if km == 0 else "v[%d:%d]" % (d, d + 3)
                a("    v_mfma_f32_16x16x32_bf16 v[%d:%d], v[%d:%d], v[%d:%d], %s" % (d, d + 3, 32 + 24 * t + 4 * km, 35 + 24 * t + 4 * km, 80 + 24 * h + 4 * km, 83 + 24 * h + 4 * km, c))
    for h in range(2):
        if h == 1: a("    s_nop 7")
        if cfg.fold:
            for j in range(8): a("    v_mul_f32 v%d, s65, v%d" % (128 + 8 * h + j, 128 + 8 * h + j))
        for j in range(4):
            a("    v_cvt_pk_bf16_f32 v%d, v%d, v%d" % (144 + 4 * h + j, 128 + 8 * h + 2 * j, 129 + 8 * h + 2 * j))
        a("    buffer_store_dwordx4 v[%d:%d], v27, s[52:55], s%d offen" % (144 + 4 * h, 147 + 4 * h, 61 + h))

GUARD = "    s_sub_u32 s43, s43, 1\n    s_cbranch_scc1 L_end"
def prologue_roles(a, cfg):
    def setbit(v): a("    ds_or_b32 v%d, v%d" % (vFA, v))
    def setimm(bit):
        a("    v_mov_b32 v%d, %d" % (vFL, 1 << bit)); setbit(vFL)
    def waitmask(lab, sreg):
        a(lab + ":")
        a(GUARD)
        a("    ds_read_b32 v%d, v%d" % (vFL, vFA))
        a("    s_waitcnt lgkmcnt(0)")
        a("    v_readfirstlane_b32 s%d, v%d" % (sFL, vFL))
        a("    s_nop 1")
        a("    s_and_b32 s42, s%d, %s" % (sFL, sreg))
        a("    s_cmp_eq_u32 s42, %s" % sreg)
        a("    s_cbranch_scc0 %s" % lab)
    def wdma(n, first=0):
        for q in range(3 * first, 3 * (first + n)):
            a("    s_add_u32 s61, s60, %d" % (q * 4096))
            a("    s_mov_b32 m0, s61")
            a("    s_nop 0")
            for j in range(4):
                a("    buffer_load_dwordx4 v1, s[52:55], s61 offen offset:%d%s lds" % (j * 1024, cfg.wflag))
    xl = [xload(0, j, e, cfg).text for j in range(12) for e in range(2)]
    def land(nblk, younger0=0):
        younger = younger0
        a("    v_mov_b32 v16, v4\n    v_mov_b32 v17, v5\n    v_mov_b32 v18, v6")
        for k in range(24):
            if k == cfg.pace or k % 2 == 1: a("    s_waitcnt vmcnt(%d)" % (23 - k + younger))
            if k == cfg.pace: setbit(31)
            if k % 2 == 1:
                for o in staging(0, k // 2): a("    " + o.text)
            if k % 4 == 3 and k // 4 < nblk: wdma(1, k // 4); younger += 12
    def arrive(lab):
        if cfg.stamp: a("    s_memtime s[92:93]")
        a("""    v_mov_b32 v32, 1
    s_lshr_b32 s60, s2, 3
    s_add_u32 s60, s60, s%d
    v_mov_b32 v33, s60
    s_mov_b64 exec, 1
    ds_add_rtn_u32 v34, v%d, v32 offset:4
    s_waitcnt lgkmcnt(0)
    v_readfirstlane_b32 s61, v34
    s_nop 1
    s_cmp_eq_u32 s61, 2
    s_cbranch_scc0 %s
    buffer_store_byte v32, v33, s[56:59], 0 offen
    v_mov_b32 v32, 0x400000
    ds_or_b32 v%d, v32
%s:
    s_mov_b64 exec, -1""" % (sXC, vFA, lab, vFA, lab))
    a("    s_lshl_b32 s42, 4096, s49\n    v_mov_b32 v31, s42")
    a("    s_cmp_eq_u32 s49, 0")
    a("    s_cbranch_scc1 L_w0")
    a("    s_cmp_lt_u32 s2, %d" % (NPROD * 8))
    a("    s_cbranch_scc0 L_noprod")
    a("L_prod:")
    def waitA():
        a("    s_bitcmp1_b32 s63, 0\n    s_cbranch_scc1 L_gotA")
        waitmask("L_wA", "0x100000")
        a("L_gotA:")
    produce(a, cfg, waitA)
    a("    s_bitcmp1_b32 s63, 0\n    s_cbranch_scc1 L_fb_next")
    a("    s_cmp_eq_u32 s49, 1")
    a("    s_cbranch_scc0 L_p23")
    if cfg.stamp: a("    s_memtime s[94:95]")
    for l in xl: a("    " + l)
    a("    s_waitcnt vmcnt(24)")
    arrive("L_nl1")
    land(0)
    a("    s_branch L_w1go")
    a("L_p23:")
    a("    s_waitcnt vmcnt(0)")
    arrive("L_nl2")
    a("L_noprod:")
    a("    s_lshl_b32 s60, 2048, s49")
    if cfg.gate:
        a("    s_cmp_lt_u32 s2, %d\n    s_cselect_b32 s61, 0x400000, 0    ; this workgroup's flag byte is on its way\n    s_or_b32 s60, s60, s61" % (NPROD * 8))
    if cfg.quiet:
        a("    s_cmp_ge_u32 s49, %d\n    s_cselect_b32 s61, 0x200000, 0\n    s_or_b32 s60, s60, s61" % cfg.quiet)
    waitmask("L_wpace", "s60")
    if cfg.stamp: a("    s_memtime s[94:95]")
    for l in xl: a("    " + l)
    land(0)
    a("L_w1go:")
    if cfg.stamp: a("    s_memtime s[90:91]")
    a("    s_cmp_eq_u32 s49, 1")
    a("    s_cbranch_scc0 L_enter")
    waitmask("L_wgo", "0x200000")
    if cfg.stamp: a("    s_memtime s[88:89]")
    a("    s_mov_b32 s60, 36864")
    wdma(3)
    a("    v_mov_b32 v%d, 8\n    v_mov_b32 v%d, 16\n    v_mov_b32 v%d, 32" % tuple(vMK))
    a("    s_branch L_enter")
    a("L_w0:")
    if cfg.stamp: a("    s_memtime s[94:95]")
    a("    s_waitcnt vmcnt(24)"); setimm(20)
    land(0)
    if cfg.stamp: a("    s_memtime s[90:91]")
    a("""L_poll0:
    s_mov_b32 s61, 0
    v_min_u32 v33, 5, v0
    v_lshlrev_b32 v33, 2, v33
    s_mov_b32 s62, 0x01010101
    v_mov_b32 v34, 0
L_poll:
    buffer_load_dword v34, v33, s[56:59], s%d offen%s      ; samples return in order; each flag byte only ever goes 0 -> 1
    s_add_u32 s61, s61, 1
    s_sleep %d
    v_cmp_ne_u32 vcc, s62, v34
    s_nop 4
    s_cbranch_vccz L_go
    s_cmp_lt_u32 s61, %d
    s_cbranch_scc1 L_poll
    s_waitcnt vmcnt(0)
    s_branch L_fb
L_go:""" % (sXC, cfg.pollflag, cfg.psleep, cfg.polls))
    if cfg.stamp: a("    s_memtime s[88:89]")
    a("    s_mov_b32 s60, 0")
    wdma(1)
    setimm(21)
    if cfg.m0first: a("    s_waitcnt vmcnt(0)"); setimm(0)
    wdma(2, 1)
    a("    v_mov_b32 v%d, 2\n    v_mov_b32 v%d, 4" % (vMK[0], vMK[1]))
    if not cfg.m0first: a("    s_waitcnt vmcnt(24)"); setimm(0)
    a("L_enter:")
    a("    v_mov_b32 v16, v4\n    v_mov_b32 v17, v5\n    v_mov_b32 v18, v6")
    a("    s_mul_i32 s60, s49, 18432\n    s_add_u32 s60, s60, 73728\n    v_add_u32 v%d, s60, v1\n    s_lshl_b32 s61, 64, s49\n    v_mov_b32 v%d, s61" % (vNW, vNB))
    a("    s_waitcnt lgkmcnt(0)")

def fallback(a):
    a("""L_fb:
    s_mov_b32 s60, 0
    s_cmp_lt_u32 s2, %d               ; the sibling waves must be done with the LDS scratch
    s_cbranch_scc0 L_fb_task
L_fbw:
%s
    ds_read_b32 v34, v%d offset:4
    s_waitcnt lgkmcnt(0)
    v_readfirstlane_b32 s61, v34
    s_nop 1
    s_cmp_eq_u32 s61, 3
    s_cbranch_scc0 L_fbw
L_fb_task:
    s_mov_b32 s63, 3
    s_branch L_raw
L_fb_raw:
    s_bitcmp1_b32 s63, 1
    s_mov_b32 s63, 1
    s_cbranch_scc1 L_raw
    s_branch L_prod
L_fb_next:
    s_waitcnt vmcnt(0)
    s_add_u32 s60, s60, 1
    s_cmp_lt_u32 s60, %d
    s_cbranch_scc1 L_fb_task
    s_branch L_go""" % (NPROD * 8, GUARD, vFA, NTASK))

def slow_paths(a):
    for key in range(7):
        a("L_slow%d:" % key)
        a(GUARD)
        a("    ds_read_b32 v%d, v%d" % (vFL, vFA))
        a("    s_waitcnt lgkmcnt(0)")
        a("    v_readfirstlane_b32 s%d, v%d" % (sFL, vFL))
        a("    s_nop 1")
        a("    s_andn2_b32 s%d, %d, s%d" % (sFL, (1 << key) if key < 6 else 0x3c0, sFL))
        a("    s_cbranch_scc1 L_slow%d" % key)
        a("    s_branch L_ok%d" % key)

SCHED = dict(mfma_period=P, dsw_gap=56, vst1_gap=24, short=True)

def main_kernel(cfg):
    L = []
    a = L.append
    K = NAME + "_kernel"
    a(".globl %s\n.p2align 8\n.type %s,@function\n%s:" % (K, K, K))
    a("""    s_cmp_ge_u32 s2, 256
    s_cbranch_scc1 L_end""")
    if cfg.stamp: a("    s_memtime s[100:101]\n    s_memrealtime s[70:71]")
    a("""    s_load_dwordx4 s[4:7], s[0:1], 0        ; x, wqkv
    s_load_dwordx4 s[20:23], s[0:1], 16
    s_load_dwordx4 s[56:59], s[0:1], 32
    v_lshrrev_b32 v16, 6, v0
    v_and_b32 v0, 63, v0
    s_getpc_b64 s[44:45]
L_pc_ref:
    v_readfirstlane_b32 s49, v16            ; wave
    s_mov_b32 s46, L_code_end-L_pc_ref
    s_mov_b32 s47, 0x00020000
    v_lshlrev_b32 v7, 6, v0
    s_lshr_b32 s60, s2, 3
""")
    if cfg.pf0 == 0:
        a("    s_and_b32 s42, s60, 3\n    s_lshl_b32 s42, s42, 2\n    s_add_u32 s42, s42, s49\n    s_lshl_b32 s42, s42, 12\n    buffer_load_dword v8, v7, s[44:47], s42 offen")
    else:
        a("    s_lshl_b32 s42, s60, 2\n    s_add_u32 s42, s42, s49\n    s_lshl_b32 s42, s42, 7\n    v_lshrrev_b32 v8, 1, v0\n    v_and_b32 v7, 1, v0\n    v_lshlrev_b32 v7, 6, v7\n    v_lshl_add_u32 v8, v8, 14, v7\n    buffer_load_dword v8, v8, s[44:47], s42 offen")
    a("""    s_cmp_lt_u32 s60, %d
    s_cbranch_scc0 L_setup
    s_cmp_ge_u32 s60, 12
    s_cselect_b32 s61, 12, 0
    s_cselect_b32 s62, 36, 0
    s_sub_u32 s61, s60, s61                 ; r
    s_and_b32 s64, s61, 1
    s_mul_i32 s64, s64, 3
    s_max_u32 s65, s49, 1
    s_add_u32 s64, s64, s65
    s_sub_u32 s64, s64, 1                   ; u
    s_mul_i32 s64, s64, 6
    s_lshr_b32 s61, s61, 1                  ; s
    s_add_u32 s60, s64, s61
    s_add_u32 s60, s60, s62                 ; task
    s_cmp_eq_u32 s49, 0
    s_cselect_b32 s63, 2, 0
L_raw:""" % NPROD)
    raw_setup(a)
    if cfg.stamp: a("    s_memtime s[72:73]")
    a("    s_waitcnt lgkmcnt(0)")
    if cfg.stamp: a("    s_memtime s[92:93]")
    raw_issue(a)
    a("    s_bitcmp1_b32 s63, 0\n    s_cbranch_scc1 L_fb_raw")
    if cfg.stamp: a("    s_memtime s[98:99]")
    a("""L_setup:
    s_mov_b32 s43, 0x400000
    v_lshlrev_b32 v1, 4, v0                 ; lane*16
    v_add_u32 v2, 0x10000, v1
    v_add_u32 v3, 0x20000, v1
    v_lshrrev_b32 v16, 3, v0
    v_and_b32 v17, 7, v0
    v_lshrrev_b32 v18, 4, v0
    v_xor_b32 v17, v17, v18
    v_lshlrev_b32 v17, 4, v17
    v_mul_u32_u24 v16, 384, v16
    v_add_u32 v9, v16, v17
    v_xor_b32 v10, 64, v9
    v_add_u32 v10, 196608, v10
    s_lshl_b32 s52, s49, 11
    s_add_u32 s52, s52, 147456
    v_lshlrev_b32 v16, 3, v0
    v_add_u32 v4, s52, v16
    v_and_b32 v16, 15, v0                   ; i
    v_lshrrev_b32 v17, 4, v0                ; g
    v_lshrrev_b32 v18, 1, v16
    v_xor_b32 v18, v18, v17
    v_lshlrev_b32 v18, 3, v18
    v_lshl_add_u32 v18, v16, 6, v18
    v_add_u32 v5, s52, v18
    v_xor_b32 v6, 32, v5
    v_lshrrev_b32 v16, 5, v0                ; g>>1
    v_mul_u32_u24 v16, 196608, v16
    v_lshrrev_b32 v17, 4, v0
    v_and_b32 v17, 1, v17
    v_mul_u32_u24 v17, 1536, v17
    v_and_b32 v18, 15, v0
    v_lshlrev_b32 v18, 3, v18
    v_add3_u32 v11, v16, v17, v18
    s_nop 0""")
    if cfg.amap == 0:
        a("    s_lshr_b32 s53, s2, 4\n    s_and_b32 s54, s2, 15")
    else:
        a("    s_and_b32 s53, s2, 7\n    s_lshl_b32 s53, s53, 3\n    s_lshr_b32 s54, s2, 7\n    s_add_u32 s53, s53, s54\n    s_lshr_b32 s54, s2, 3\n    s_and_b32 s54, s54, 15")
    a("""    s_mul_i32 s53, s53, 1572864
    s_lshl_b32 s54, s54, 2
    s_add_u32 s54, s54, s49
    s_mul_i32 s54, s54, 3072
    s_add_u32 s53, s53, s54""")
    for rho in range(0, 8, 2):
        a("    s_add_u32 s%d, s53, %d" % (sLD + rho, rho * ROWB))
    a("    v_mov_b32 v%d, %d\n    v_mov_b32 v30, 0\n    v_mov_b32 v31, 0\n    ds_write_b64 v%d, v[30:31]" % (vFA, FLAG, vFA))
    a("    s_getreg_b32 s%d, hwreg(HW_REG_XCC_ID, 0, 3)" % sXC)
    a("    s_waitcnt lgkmcnt(0)")
    a("    s_mov_b32 s8, s4\n    s_mov_b32 s9, s5\n    s_mov_b32 s10, %d\n    s_mov_b32 s11, 0x00020000" % XBYTES)
    if not cfg.x0pre: a("    s_barrier")
    a("    s_cmp_eq_u32 s49, 0\n    s_cbranch_scc0 L_nox0")
    for j in range(12):
        for e in range(2): a("    " + xload(0, j, e, cfg).text)
    a("L_nox0:")
    if cfg.x0pre: a("    s_barrier")
    a("    s_mov_b32 s3, s53") if not cfg.stamp else a("    s_mov_b32 s99, s53")
    a("    s_mov_b32 s12, s22\n    s_mov_b32 s13, s23\n    s_mov_b32 s14, %d\n    s_mov_b32 s15, 0x00020000" % XBYTES)
    a("    s_mov_b32 s%d, %s" % (sKAP, f32hex(KAPPA)))
    a("    s_mov_b32 s50, s58\n    s_mov_b32 s51, s59")
    a("    s_mov_b32 s58, 256\n    s_mov_b32 s59, 0x00020000")
    if cfg.stamp:
        a("    s_mov_b64 s[22:23], s[70:71]\n    s_mov_b32 s3, s98")
        a("    s_add_u32 s68, s50, 0x300000\n    s_addc_u32 s69, s51, 0\n    s_mov_b32 s70, 0x200000\n    s_mov_b32 s71, 0x00020000")
        a("    s_lshl_b32 s98, s2, 2\n    s_add_u32 s98, s98, s49\n    s_lshl_b32 s98, s98, 7")
    a("    s_mul_i32 s52, s%d, %d\n    s_add_u32 s52, s50, s52\n    s_addc_u32 s53, s51, 0\n    s_mov_b32 s54, %d\n    s_mov_b32 s55, 0x00020000" % (sXC, WIMG, WIMG))
    a("    s_lshl_b32 s%d, s%d, 5" % (sXC, sXC))
    prologue_roles(a, cfg)
    a("    s_sub_u32 s%d, s%d, %d" % (sWIN, 99 if cfg.stamp else 3, 2 * WSTEP(cfg)))
    a("    s_mov_b32 s19, %d\n    s_mov_b32 s18, 0" % XBYTES)
    for rho in range(0, 8, 2): a("    s_mov_b32 s%d, %d" % (sST(1) + rho, XBYTES))
    hl, b1, b2, tl = make_stream(cfg)
    import re as _re
    nv = 0; out = []
    for l in hl:
        m = _re.search(r"@(\d+)\+(\d+)@", l)
        if m: l = l.replace(m.group(0), str(min(63, int(m.group(2)) + nv)))
        if "buffer_" in l: nv += 1
        out.append(l)
    hl = out
    txt = "\n".join(hl)
    assert all(txt.index("L_pub%d:" % k) < txt.index("L_slow%d" % b) for k, b in enumerate(PUBB)) and txt.index("ds_or_b32 v%d, v%d" % (vFA, vNB)) < txt.index("L_slow6")
    def itstamp(slot, bypass=False):
        r = "    s_memtime s[62:63]\n    s_waitcnt lgkmcnt(0)\n    v_mov_b32 v26, s62\n    v_mov_b32 v27, s63\n"
        r += ("    s_lshl_b32 s66, s18, 4\n    s_add_u32 s66, s66, s98\n    v_mov_b32 v28, s66\n" if bypass else "    v_mov_b32 v28, s98\n")
        return r + "    s_mov_b64 exec, 1\n    buffer_store_dwordx2 v[26:27], v28, s[68:71], 0 offen offset:%d\n    s_mov_b64 exec, -1" % (8 * slot)
    def marked(lines, marks):
        o = []; n = 0
        for l in lines:
            if "v_mfma" in l:
                if cfg.stamp and n in marks: o.append(marks[n])
                n += 1
            o.append(l)
        return o
    L += marked(hl, {k: "    s_memtime s[%d:%d]" % (v, v + 1) for k, v in {0: 74, 48: 76, 112: 78, 176: 80, 240: 82, 304: 84}.items()})
    if cfg.stamp:
        a("    s_memtime s[86:87]\n    s_waitcnt lgkmcnt(0)\n    s_add_u32 s66, s98, 0x40000\n    v_mov_b32 v28, s66\n    s_mov_b64 exec, 1")
        for i in range(13):
            a("    v_mov_b32 v26, s%d\n    buffer_store_dword v26, v28, s[68:71], 0 offen offset:%d" % (72 + 2 * i if i < 12 else 3, 4 * i))
        a("    v_mov_b32 v28, s98\n    v_mov_b32 v26, s100\n    v_mov_b32 v27, s101\n    buffer_store_dwordx2 v[26:27], v28, s[68:71], 0 offen")
        a("    v_mov_b32 v26, s22\n    v_mov_b32 v27, s23\n    buffer_store_dwordx2 v[26:27], v28, s[68:71], 0 offen offset:64\n    s_mov_b64 exec, -1")
        a(itstamp(1)); a(itstamp(2))
    a("L_loop:")
    pm = {}
    def dump():
        a("    s_waitcnt lgkmcnt(0)\n    s_add_u32 s66, s98, 0x60000\n    v_mov_b32 v28, s66\n    s_mov_b64 exec, 1")
        for i in range(13): a("    v_mov_b32 v26, s%d\n    buffer_store_dword v26, v28, s[68:71], 0 offen offset:%d" % (72 + 2 * i, 4 * i))
        a("    s_mov_b64 exec, -1")
    if cfg.probe is not None: pm = {cfg.probe + k * cfg.pstep: "    s_memtime s[%d:%d]" % (72 + 2 * k, 73 + 2 * k) for k in range(13)}
    m1 = {NM: itstamp(3, True), NM - cfg.R + 672: itstamp(6)} if cfg.probe is None else pm
    L += marked(b1, m1)
    a("    s_cmp_eq_u32 s18, 1")
    a("    s_cbranch_scc0 L_more")
    a("L_tail:")
    L += tl
    if cfg.stamp:
        a("    s_waitcnt vmcnt(0)")
        stamp(a, 7); stamp(a, 9, True)
        if cfg.probe is not None and cfg.ppass == 2: dump()
    a("L_end:")
    a("    s_endpgm")
    a("L_more:")
    L += marked(b2, {k - (2 * NM - cfg.R): v for k, v in pm.items()})
    if cfg.stamp and cfg.probe is not None and cfg.ppass == 1: dump()
    if cfg.stamp: a(itstamp(4))
    if cfg.mute: a("    v_mov_b32 v16, 0x30000\n    v_mov_b32 v17, 0x30000\n    v_mov_b32 v18, 0x30000")
    a("    s_mov_b32 s18, 1\n    s_mov_b32 s19, 0\n    s_branch L_loop")
    lines = hl + b1 + b2 + tl
    slow_paths(a)
    fallback(a)
    a("L_code_end:")
    nw = sum(1 for l in lines if 's_waitcnt' in l); nn = sum(1 for l in lines if 's_nop' in l)
    sys.stderr.write("lines=%d waits=%d nops=%d\n" % (len(lines), nw, nn))
    return "\n".join(L) + "\n"

MAIN_DESC = """.amdhsa_kernel %s_kernel
  .amdhsa_next_free_vgpr 512
  .amdhsa_next_free_sgpr 102
  .amdhsa_accum_offset 256
  .amdhsa_group_segment_fixed_size 0
  .amdhsa_kernarg_size 48
  .amdhsa_user_sgpr_count 2
  .amdhsa_user_sgpr_kernarg_segment_ptr 1
  .amdhsa_system_sgpr_workgroup_id_x 1
.end_amdhsa_kernel
""" % NAME

def generate(cfg):
    s = HEADER
    s += "; @launch grid=(256,1,1) block=(256,1,1) lds=163840\n"
    s += '.amdgcn_target "amdgcn-amd-amdhsa--gfx950"\n.text\n'
    s += main_kernel(cfg)
    s += '.section .rodata,"a"\n.p2align 6\n' + MAIN_DESC
    return s

if __name__ == "__main__":
    ap = argparse.ArgumentParser()
    ap.add_argument("-o", default="/code/%s.s" % NAME)
    ap.add_argument("--stamp", action="store_true")
    ap.add_argument("--set", action="append", default=[])
    args = ap.parse_args()
    cfg = Cfg(); cfg.stamp = args.stamp
    for kv in args.set:
        k, v = kv.split("="); setattr(cfg, k, eval(v))
    open(args.o, "w").write(generate(cfg))
```

```python
import re

def regs(kind, base, n=1):
    return [(kind, base + i) for i in range(n)]
def V(b, n=1): return regs('v', b, n)
def A(b, n=1): return regs('a', b, n)
def S(b, n=1): return regs('s', b, n)

def rtxt(kind, base, n=1):
    if n == 1: return "%s%d" % (kind, base)
    return "%s[%d:%d]" % (kind, base, base + n - 1)

COST = dict(dsw1=8, dsw2=12, label=0, bar=12, mfma=8, valu=4, trans=8, perm=8, dsr=4, dsw=20, vld=4, vst=20, vst1=12, salu=4, dma=20, wait=4, nop=4, br=4)
MEMK = ('dsr', 'dsw', 'dsw1', 'dsw2', 'vld', 'vst', 'vst1', 'dma')
DSK = ('dsr', 'dsw', 'dsw1', 'dsw2')
MEM_MFMA_GAP = 8

class Op:
    __slots__ = ("text", "kind", "reads", "writes", "cost", "idx", "preds", "succs", "alap", "asap", "pin",
                 "deadline", "earliest", "emitted", "t", "tag", "creads", "passes", "grp", "req", "lat", "emi")
    def __init__(self, text, kind, reads=(), writes=(), deadline=None, earliest=None, tag="", creads=(), passes=8):
        self.text = text; self.kind = kind
        self.reads = list(reads); self.writes = list(writes)
        self.creads = list(creads)
        self.cost = COST[kind]
        self.preds = []; self.succs = []
        self.deadline = deadline; self.earliest = earliest
        self.pin = None; self.emitted = False; self.t = None; self.tag = tag
        self.passes = passes
        self.grp = 'cur'; self.req = None; self.lat = None; self.emi = 0
    def __repr__(self): return self.text

def raw_latency(p, c):
    if p.lat is not None: return p.lat
    if p.kind == 'mfma':
        if c.kind == 'mfma' and set(c.creads) & set(p.writes) and not (set(c.reads) - set(c.creads)) & set(p.writes):
            return 0
        return p.passes * 4 + 40
    if p.kind == 'dsr': return 140
    if p.kind == 'vld': return 4000
    if p.kind == 'dma': return 1200 if c.kind == 'bar' else 4
    if p.kind == 'trans': return 12
    if p.kind in ('valu', 'perm'):
        if c.kind == 'mfma' or c.kind == 'perm': return 12
        return 4
    return 4

def build_dag(ops):
    last_w = {}; readers = {}
    for i, o in enumerate(ops):
        o.idx = i; o.preds = []; o.succs = []
    def edge(p, c, lat):
        if p is c: return
        c.preds.append((p, lat)); p.succs.append((c, lat))
    for o in ops:
        for r in o.reads:
            if r in last_w: edge(last_w[r], o, raw_latency(last_w[r], o))
        for r in o.writes:
            if r in last_w:
                p = last_w[r]
                lat = 4
                if p.kind == 'mfma' and o.kind != 'mfma': lat = p.passes * 4 + 40
                if p.kind == 'mfma' and o.kind == 'mfma': lat = 0 if r in o.creads else p.passes*4+16
                if p.kind in ('dsr', 'vld'): lat = raw_latency(p, o)
                edge(p, o, lat)
            for q in readers.get(r, []):
                lat = 4
                if q.kind == 'mfma': lat = 8
                if q.kind == 'vld' and False: lat = 4
                edge(q, o, lat)
        for r in o.reads:
            readers.setdefault(r, []).append(o)
        for r in o.writes:
            last_w[r] = o; readers[r] = []
    return ops

def schedule(ops, mfma_period=32, budget=24, verbose=False, horizon=None, merge_slack=220, mem_bias=400, urgent=300, dsw_gap=56, vst_gap=60, vst1_gap=28, lds_queue=40, slack=0, short=False):
    build_dag(ops)
    mf = [o for o in ops if o.kind == 'mfma']
    for i, o in enumerate(mf): o.pin = i * mfma_period
    end = len(mf) * mfma_period if horizon is None else horizon
    for o in reversed(ops):
        if o.kind == 'mfma':
            o.alap = o.pin; continue
        a = end + 10000
        for (c, lat) in o.succs:
            a = min(a, c.alap - max(lat, o.cost))
        if o.deadline is not None: a = min(a, o.deadline)
        o.alap = a
    out = []
    t = 0
    ready_t = {}
    npred = {id(o): len(o.preds) for o in ops}
    avail = [o for o in ops if not o.preds and o.kind != 'mfma']
    def rt(o):
        r = 0
        for (p, lat) in o.preds: r = max(r, p.t + lat)
        if o.earliest is not None: r = max(r, o.earliest)
        return r
    hs = State()
    pend = {}
    res = dict(dsw=-999, vst=-999, lds=0)
    def res_ok(o, tt):
        if o.kind == 'dsw' and tt < res['dsw'] + dsw_gap: return False
        if o.kind == 'vst' and tt < res['vst'] + vst_gap: return False
        if o.kind == 'vst1' and tt < res['vst'] + vst1_gap: return False
        if o.kind in DSK and res['lds'] - tt > lds_queue: return False
        return True
    def res_upd(o, tt):
        if o.kind == 'dsw': res['dsw'] = tt
        if o.kind in ('vst', 'vst1'): res['vst'] = tt
        if o.kind in DSK: res['lds'] = max(res['lds'], tt) + (16 if o.kind in ('dsr', 'dsw1') else (24 if o.kind == 'dsw2' else 40))
    pendv = {}
    def extra(o):
        return 4 if any((r in pend or r in pendv) for r in o.reads + o.writes) else 0
    def emit(o, tt):
        o.t = tt; o.emitted = True; out.append(o)
        track(hs, o); res_upd(o, tt)
        hit = [pend[r] for r in o.reads + o.writes if r in pend]
        if hit:
            tmax = max(max(hit), tt - merge_slack)
            for r in [r for r, x in pend.items() if x <= tmax]: del pend[r]
        hit = [pendv[r] for r in o.reads + o.writes if r in pendv]
        if hit:
            tmax = max(max(hit), tt - 3000)
            for r in [r for r, x in pendv.items() if x <= tmax]: del pendv[r]
        if o.kind == 'dsr':
            for r in o.writes:
                if isinstance(r, tuple): pend[r] = tt
        if o.kind == 'vld':
            for r in o.writes: pendv[r] = tt
        for (c, lat) in o.succs:
            npred[id(c)] -= 1
            if npred[id(c)] == 0 and c.kind != 'mfma': avail.append(c)
    def force(o):
        nonlocal t
        need = []
        seen = set()
        def rec(x):
            for (p, lat) in x.preds:
                if not p.emitted and id(p) not in seen:
                    seen.add(id(p)); rec(p); need.append(p)
        rec(o)
        need.sort(key=lambda x: x.idx)
        for p in need:
            assert p.kind != 'mfma', ("backbone order violates deps", o.text, p.text)
            tt = max(t, rt(p)) if False else t
            if p in avail: avail.remove(p)
            tt = max(t, rt(p))
            emit(p, tt); t = tt + p.cost
            stats['forced'] += 1
    stats = dict(forced=0, stall=0)
    pipe_free = 0
    for mi, m in enumerate(mf):
        force(m)
        tt = max(t, pipe_free, rt(m))
        if tt > max(t, pipe_free): stats['stall'] += tt - max(t, pipe_free)
        if tt > pipe_free and mi > 0: stats.setdefault('late', []).append((mi, tt - pipe_free, m.tag))
        emit(m, tt)
        t = tt + m.cost
        pipe_free = tt + m.passes * 4
        nxt = mf[mi + 1] if mi + 1 < len(mf) else None
        limit = pipe_free + slack
        needw = lambda o: any((r in pend or r in pendv) for r in o.reads + o.writes)
        slot0 = None
        if nxt is not None and needw(nxt): slot0 = 'wait'
        else:
            sc = [o for o in avail if o.kind == 'salu' and o.emi <= mi and rt(o) <= t and need_states(hs, o) <= 0]
            sc.sort(key=lambda o: (o.alap, o.idx))
            if sc:
                pick = sc[0]; avail.remove(pick); emit(pick, t - 4); t += pick.cost - 4; slot0 = 'salu'
        held = set(pend) | set(pendv)
        def xtra(o):
            hit = [r for r in o.reads + o.writes if r in pend or r in pendv]
            if not hit: return 0
            return 0 if (slot0 != 'salu' and all(r in held for r in hit)) else 4
        while True:
            ok = [o for o in avail if o.emi <= mi and rt(o) <= t and need_states(hs, o) <= 0 and res_ok(o, t)]
            mem = [o for o in ok if o.kind in MEMK and t <= tt + m.cost and (xtra(o) == 0 or o.cost <= 4)]
            oth = [o for o in ok if o.kind not in MEMK and t + o.cost + xtra(o) <= limit]
            mem.sort(key=lambda o: (o.alap, o.idx)); oth.sort(key=lambda o: (o.alap, o.idx))
            pick = None
            if mem and (not oth or mem[0].alap <= oth[0].alap + mem_bias or mem[0].alap <= t + urgent): pick = mem[0]
            elif oth: pick = oth[0]
            elif mem: pick = mem[0]
            if pick is None: break
            avail.remove(pick)
            c = xtra(pick)
            if c == 0 and needw(pick): slot0 = 'wait'
            emit(pick, t + c); t += pick.cost + c
            if nxt is not None and limit == pipe_free + slack and xtra(nxt): limit -= 4
    while avail:
        avail.sort(key=lambda o: (o.alap, o.idx))
        o = avail.pop(0)
        tt = max(t, rt(o)); emit(o, tt); t = tt + o.cost
    assert all(o.emitted for o in ops), [o.text for o in ops if not o.emitted][:5]
    stats['end'] = t; stats['pipe_end'] = pipe_free
    return out, stats

VALU_KINDS = ('valu', 'trans', 'perm')

class State:
    def __init__(self):
        self.pos = 0
        self.lastw = {}
        self.cread = {}
        self.lgkm = []
        self.vm = []
        self.pend = {}
        self.time = 0
        self.seq = 0
        self.mfree = -100
        self.moff = 0

MFMA_STATES = 7
def need_states(st, o):
    return _need_states(st, o)

def mpos_of(st, o):
    m = st.pos + st.moff
    if o.kind == 'mfma': m = max(m, st.mfree)
    return m

def advance_mfma(st, o):
    if o.kind == 'mfma':
        m = mpos_of(st, o); st.moff = m - st.pos; st.mfree = m + (o.passes - 1)

def _need_states(st, o):
    need = 0
    def req(r, n, table=None):
        nonlocal need
        e = (table or st.lastw).get(r)
        return e
    for r in o.reads:
        e = st.lastw.get(r)
        if e is None: continue
        pos, p, mp = e
        dist = (mpos_of(st, o) - mp - 1) if p.kind == 'mfma' else (st.pos - pos - 1)
        n = 0
        if p.kind == 'mfma':
            if o.kind == 'mfma':
                if r in o.creads and not (r in [x for x in o.reads if x not in o.creads]):
                    same = (p.writes == o.creads)
                    n = 0 if same else p.passes + 2
                else:
                    n = p.passes + 4
            else:
                n = p.passes + 4
        elif p.kind in VALU_KINDS:
            if r[0] in ('v', 'a'):
                if o.kind == 'mfma': n = 2
                elif o.kind == 'perm': n = 2
                elif p.kind == 'trans' and o.kind != 'trans': n = 1
                elif p.kind == 'trans': n = 1
                if 'readlane' in o.text or 'readfirstlane' in o.text: n = max(n, 1)
                if 'dpp' in o.text or 'quad_perm' in o.text or 'row_' in o.text: n = max(n, 2)
            else:
                if o.kind in ('vld', 'vst', 'vst1', 'dma'): n = 5
                elif o.kind in VALU_KINDS: n = 2
                else: n = 2
        elif p.kind == 'salu':
            if r == 'm0' and o.kind in ('dma',): n = 1
        need = max(need, n - dist)
    for r in o.writes:
        e = st.lastw.get(r)
        if e is not None:
            pos, p, mp = e
            dist = (mpos_of(st, o) - mp - 1) if p.kind == 'mfma' else (st.pos - pos - 1)
            if p.kind == 'mfma' and not (o.kind == 'mfma' and r in o.creads and p.writes == o.creads):
                if o.kind == 'mfma':
                    n = p.passes + 2
                else:
                    n = p.passes + 4
                need = max(need, n - dist)
        e = st.cread.get(r)
        if e is not None and o.kind != 'mfma':
            pos, p, mp = e
            dist = mpos_of(st, o) - mp - 1
            need = max(need, (p.passes - 1) - dist)
        e = st.lastw.get(('stdata', r))
        if e is not None:
            pos, p, mp = e
            dist = st.pos - pos - 1
            need = max(need, 2 - dist)
    return need

def track(st, o):
    advance_mfma(st, o)
    mp = st.pos + st.moff
    for r in o.writes:
        if o.kind in ('dsr', 'vld'): st.lastw.pop(r, None)
        else: st.lastw[r] = (st.pos, o, mp)
        st.cread.pop(r, None)
    if o.kind == 'mfma':
        for r in o.creads: st.cread[r] = (st.pos, o, mp)
    st.pos += 1

def finalize(seq, st=None, tbase=0, merge_slack=220, vm_slack=3000, reqs=None, collect=None, exact=False):
    if st is None: st = State()
    lines = []
    def younger(q, sq):
        for k, e_ in enumerate(q):
            if e_[0] == sq: return len(q) - 1 - k
        return None
    for i, o in enumerate(seq):
        if o.t is not None: st.time = (tbase + o.t) if exact else max(st.time, tbase + o.t)
        needl = None; needv = None
        for r in list(o.reads) + list(o.writes):
            e = st.pend.get(r)
            if e is None: continue
            cnt, sq = e
            k = younger(st.lgkm if cnt == 'lgkm' else st.vm, sq)
            if k is None: continue
            if cnt == 'lgkm': needl = k if needl is None else min(needl, k)
            else: needv = k if needv is None else min(needv, k)
        if needl is not None:
            q = st.lgkm; k = needl
            while k > 0:
                cand = q[len(q) - k]
                if cand[1] + merge_slack <= st.time: k -= 1
                else: break
            needl = min(k, 15)
        if needv is not None:
            q = st.vm; k = needv
            while k > 0:
                cand = q[len(q) - k]
                if cand[2] == 'vld' and cand[1] + vm_slack <= st.time: k -= 1
                else: break
            needv = min(k, 63)
        rn = 0
        if reqs is not None:
            rv, rl, rn = reqs[i]
            if rv is not None: needv = rv if needv is None else min(needv, rv)
            if rl is not None: needl = rl if needl is None else min(needl, rl)
        if needl is not None or needv is not None:
            g = getattr(st, 'gap', None)
            hoist = False
            if g is not None and g[5] is lines and (needv is None or needv >= g[3]) and (needl is None or needl >= g[2]):
                first = lines[g[0] + 1].strip() if len(lines) > g[0] + 1 else None
                if first is not None and (g[4] is not None or not (first.startswith("s_") or first.startswith("L_"))): hoist = True
            if needv is not None: st.vm = st.vm[max(0, len(st.vm) - needv):] if needv > 0 else []
            if needl is not None: st.lgkm = st.lgkm[max(0, len(st.lgkm) - needl):] if needl > 0 else []
            txt = lambda v, l: "    s_waitcnt " + " ".join((["vmcnt(%d)" % v] if v is not None else []) + (["lgkmcnt(%d)" % l] if l is not None else []))
            if hoist:
                hv = None if needv is None else needv - g[3]; hl_ = None if needl is None else needl - g[2]
                mn = lambda x, y: x if y is None else (y if x is None else min(x, y))
                if g[4] is None:
                    lines.insert(g[0] + 1, txt(hv, hl_)); g[4] = (hv, hl_)
                    for tab in (st.lastw, st.cread):
                        for r_, e_ in list(tab.items()):
                            if e_[0] > g[1]: tab[r_] = (e_[0] + 1, e_[1], e_[2] + 1)
                    st.pos += 1
                else:
                    g[4] = (mn(g[4][0], hv), mn(g[4][1], hl_)); lines[g[0] + 1] = txt(*g[4])
            else:
                lines.append(txt(needv, needl))
                if g is not None and g[5] is lines and len(lines) == g[0] + 2: g[4] = (needv, needl)
                st.pos += 1; st.time += 0 if exact else 4
        k = max(need_states(st, o), rn - (1 if (needl is not None or needv is not None) else 0) * 0)
        if collect is not None: collect.append((needv, needl, k))
        while k > 0:
            m = min(k, 16)
            lines.append("    s_nop %d" % (m - 1))
            st.pos += m; st.time += 4 * m; k -= m
        if o.kind == 'label':
            lines.append(o.text); continue
        lines.append("    " + o.text + (("    ; " + o.tag) if o.tag else ""))
        st.seq += 1
        advance_mfma(st, o)
        mp = st.pos + st.moff
        for r in o.writes:
            st.pend.pop(r, None)
            if (o.kind in ('dsr', 'vld', 'dma') and isinstance(r, tuple)) or (o.kind == 'dsw' and isinstance(r, tuple) and r[0] == 'IMG'):
                st.pend[r] = ('lgkm' if o.kind in ('dsr', 'dsw') else 'vm', st.seq)
                st.lastw.pop(r, None)
            else:
                st.lastw[r] = (st.pos, o, mp)
            st.cread.pop(r, None)
        if o.kind == 'mfma':
            for r in o.creads: st.cread[r] = (st.pos, o, mp)
        if o.kind == 'vst' and ('dwordx4' in o.text or 'dwordx3' in o.text):
            for r in o.reads: st.lastw[('stdata', r)] = (st.pos, o, mp)
        if o.kind == 'mfma': st.gap = [len(lines) - 1, st.pos, 0, 0, None, lines]
        elif getattr(st, 'gap', None) is not None:
            if "\n" in o.text: st.gap = None
            elif o.kind in DSK: st.gap[2] += 1
            elif o.kind in ('vld', 'vst', 'vst1', 'dma'): st.gap[3] += 1
        if o.kind in DSK: st.lgkm.append((st.seq, st.time))
        if o.kind in ('vld', 'vst', 'vst1', 'dma'):
            st.vm.append((st.seq, st.time, o.kind)); st.maxvm = max(getattr(st, 'maxvm', 0), len(st.vm))
        if o.kind in DSK: st.maxlg = max(getattr(st, 'maxlg', 0), len(st.lgkm))
        if o.text.startswith("s_waitcnt"):
            m = re.search(r"vmcnt\((\d+)\)", o.text)
            if m:
                k = int(m.group(1)); st.vm = st.vm[max(0, len(st.vm) - k):] if k > 0 else []
            m = re.search(r"lgkmcnt\((\d+)\)", o.text)
            if m:
                k = int(m.group(1)); st.lgkm = st.lgkm[max(0, len(st.lgkm) - k):] if k > 0 else []
        n = 1
        m = re.match(r"s_nop (\d+)", o.text)
        if m: n = int(m.group(1)) + 1
        st.pos += n; st.time += o.cost
    return lines

def merge_reqs(a, b):
    out = []
    for (v1, l1, n1), (v2, l2, n2) in zip(a, b):
        mn = lambda x, y: x if y is None else (y if x is None else min(x, y))
        out.append((mn(v1, v2), mn(l1, l2), max(n1, n2)))
    return out
```

```python
import sys, struct, math, argparse
sys.path.insert(0, "gen"); sys.path.insert(0, "gen")
from sched2 import *

NAME = "standalone__swin_window_attn__vision"
DELTA = 25165824
XBYTES = 100663296
ROWB = 196608
WIMG = 147456
KAPPA = (192 ** -0.5) * math.log2(math.e)
NM = 768
P = 16
def f32hex(x): return "0x%08x" % struct.unpack("<I", struct.pack("<f", x))[0]

HEADER = """; Kernarg layout for this problem (48 bytes, ptrs only, base s[0:1]):
"""

vWB = [1, 2, 3]; vSTO = 11
vMX = [12, 13, 14, 15]; vSM = [20, 21, 22, 23]; vTMP = 16
def vS(kb, tb): return 32 + tb * 16 + kb * 4
def vP(tb, v): return 32 + tb * 8 + v * 4
def vACC(h, i): return 96 + h * 16 + i * 4
def vVB(cb, v): return 128 + cb * 8 + v * 4
def vYB(tb, u=1): return (208 if u & 1 else YB0) + tb * 4
YB0 = 208
def vH(m, tb): return (224, 128, 160)[m] + tb * 8
def aXF(par, tb, s): return par * 96 + (tb * 6 + s) * 4
RING = 15
def aWR(q): return 192 + (q % RING) * 4
sX = 8; sOUT = 12; sLD = 24; sKAP = 40
def sST(par): return 32 + par
sSTE = 52
sWIN = 16

class Cfg:
    ldflag = " nt"; stflag = " sc1"; wflag = ""; wlead = 26; stamp = False
    ldlat = 150; stgd = 40; R = 368; amap = 1; mute = 0; ppass = 1; w32 = 1; abl = None; prt = 0
    ldtA = (676, 732, 788, 844, 900, 956, 1012, 1068, 1124, 1180, 1236, 1292)
    stgA = (50, 100, 150, 570, 590, 610, 630, 650, 670, 690, 710, 730)
    ldtB = (742, 798, 854, 910, 966, 1022, 1078, 1134, 1190, 1246, 1302, 1358)
    stgB = (310, 335, 360, 720, 735, 750, 772, 786, 810, 835, 870, 900)
    sttA = ((48, 700, 11.7),); stmA = (0, 1, 2)
    sttB = ((8, 505, 7), (8, 568, 8), (16, 650, 5), (4, 754, 3), (12, 800, 25)); stmB = (0, 1, 2)
    stE = ()
    hd_x0 = 150; hd_xstep = 22
    n0 = 24; nstep = 6; nlat = 80
    g3c = 1; fold = 1; frag = 0; chain = 1; wsp = 2; wdl = 6; probe = None; l2t = (); l2w = (); l2o = 2048; hop = 128; hopw = 2; pstep = 64; mode = 'nnns'; stt_0 = None; ldt_2 = None; stg_2 = None; xpf = (); xpflag = ""; ab = (); split = 1; pft = 96; pflead = 100; pf0 = 1
    fm = (10, 60); f1 = (30, 80, 130); pace = 3; polls = 400; pollflag = " nt"; psleep = 4; x0pre = 0; m0first = 0; quiet = 0; gate = 1

def stamp(a, idx, rt=False):
    a("    %s s[62:63]" % ("s_memrealtime" if rt else "s_memtime"))
    a("    s_waitcnt lgkmcnt(0)")
    a("    v_mov_b32 v26, s62\n    v_mov_b32 v27, s63\n    v_mov_b32 v28, s98")
    a("    s_mov_b64 exec, 1")
    a("    buffer_store_dwordx2 v[26:27], v28, s[68:71], 0 offen offset:%d" % (idx * 8))
    a("    s_mov_b64 exec, -1")

def mfma(d, a_kind, a, b_kind, b, first, tag=""):
    c = "0" if first else rtxt('v', d, 4)
    cr = [] if first else V(d, 4)
    return Op("v_mfma_f32_16x16x32_bf16 %s, %s, %s, %s" % (rtxt('v', d, 4), rtxt(a_kind, a, 4), rtxt(b_kind, b, 4), c),
              'mfma', reads=regs(a_kind, a, 4) + regs(b_kind, b, 4) + cr, writes=V(d, 4), creads=cr, tag=tag, passes=4)

def wread(q, k, **kw):
    off = k * 1024
    base = vWB[off // 65536]
    return Op("ds_read_b128 %s, v%d offset:%d" % (rtxt('a', aWR(q), 4), base, off % 65536), 'dsr',
              reads=V(base), writes=A(aWR(q), 4), tag="W%d" % k, **kw)

def cvt(dst, s0, s1, **kw):
    return Op("v_cvt_pk_bf16_f32 v%d, v%d, v%d" % (dst, s0, s1), 'valu', reads=V(s0) + V(s1), writes=V(dst), **kw)

XPA = [(tb, m) for tb in range(4) for m in range(3)]
XPB = XPA[:6] + [(tb, m) for m in range(3) for tb in (2, 3)]
XP = (XPA, XPB)
vLDE = [9, 10]; vSTW = 4; vSTR = [5, 6]
def xload(par, j, e, cfg, **kw):
    tb, m = XP[par][j]; d = aXF(par, tb, 2 * m + e)
    o = Op("buffer_load_dwordx4 %s, v%d, s[%d:%d], s%d offen offset:%d%s" %
           (rtxt('a', d, 4), vLDE[e], sX, sX + 3, sLD + 2 * tb, 128 * m, cfg.ldflag), 'vld',
           reads=V(vLDE[e]) + S(sX, 4) + S(sLD + 2 * tb), writes=A(d, 4), **kw)
    o.lat = cfg.ldlat * P
    return o
W32 = False
def staging(par, j, wide=False, **kw):
    tb, m = XP[par][j]; o = []
    vSTW, vSTR = ((16, [17, 18]), (4, [5, 6]))[par]
    keys = []
    for e in range(2):
        for h in range(2):
            d = aXF(par, tb, 2 * m + e) + 2 * h
            if W32 and not wide:
                for c in range(2):
                    keys.append('STG%d%d%d' % (e, h, c))
                    o.append(Op("ds_write_b32 v%d, a%d offset:%d" % (vSTW, d + c, 1024 * h + 512 * e + 4 * c), 'dsw1', reads=V(vSTW) + A(d + c), writes=[keys[-1]], **kw))
            else:
                keys += ['STG%d%d0' % (e, h), 'STG%d%d1' % (e, h)]
                o.append(Op("ds_write_b64 v%d, %s offset:%d" % (vSTW, rtxt('a', d, 2), 1024 * h + 512 * e), 'dsw2', reads=V(vSTW) + A(d, 2), writes=keys[-2:], **kw))
    for sp in range(2):
        d = aXF(par, tb, 2 * m + sp)
        o.append(Op("ds_read2_b64 %s, v%d offset0:0 offset1:128" % (rtxt('a', d, 4), vSTR[sp]), 'dsr',
                    reads=V(vSTR[sp]) + keys, writes=A(d, 4), **kw))
    return o

def vop(text, rd, wr, kind='valu'): return Op(text, kind, rd, wr)

def cross_reduce(o, r, opn, tmp, post):
    a_, b_, c_, d_ = r
    o.append(vop("v_permlane16_swap_b32 v%d, v%d" % (a_, b_), V(a_) + V(b_), V(a_) + V(b_), 'perm'))
    o.append(vop("v_permlane16_swap_b32 v%d, v%d" % (c_, d_), V(c_) + V(d_), V(c_) + V(d_), 'perm'))
    o.append(vop("%s v%d, v%d, v%d" % (opn, a_, a_, b_), V(a_) + V(b_), V(a_)))
    o.append(vop("%s v%d, v%d, v%d" % (opn, c_, c_, d_), V(c_) + V(d_), V(c_)))
    o.append(vop("v_permlane32_swap_b32 v%d, v%d" % (a_, c_), V(a_) + V(c_), V(a_) + V(c_), 'perm'))
    o.append(vop("%s v%d, v%d, v%d" % (opn, a_, a_, c_), V(a_) + V(c_), V(a_)))
    post(a_)
    o.append(vop("v_mov_b32 v%d, v%d" % (c_, a_), V(a_), V(c_)))
    o.append(vop("v_permlane32_swap_b32 v%d, v%d" % (a_, c_), V(a_) + V(c_), V(a_) + V(c_), 'perm'))
    o.append(vop("v_mov_b32 v%d, v%d" % (b_, a_), V(a_), V(b_)))
    o.append(vop("v_mov_b32 v%d, v%d" % (d_, c_), V(c_), V(d_)))
    o.append(vop("v_permlane16_swap_b32 v%d, v%d" % (a_, b_), V(a_) + V(b_), V(a_) + V(b_), 'perm'))
    o.append(vop("v_permlane16_swap_b32 v%d, v%d" % (c_, d_), V(c_) + V(d_), V(c_) + V(d_), 'perm'))

def cross_reduce2(o, r, opn, post):
    a_, b_ = r
    o.append(vop("v_permlane16_swap_b32 v%d, v%d" % (a_, b_), V(a_) + V(b_), V(a_) + V(b_), 'perm'))
    o.append(vop("%s v%d, v%d, v%d" % (opn, a_, a_, b_), V(a_) + V(b_), V(a_)))
    o.append(vop("v_mov_b32 v%d, v%d" % (b_, a_), V(a_), V(b_)))
    o.append(vop("v_permlane32_swap_b32 v%d, v%d" % (a_, b_), V(a_) + V(b_), V(a_) + V(b_), 'perm'))
    o.append(vop("%s v%d, v%d, v%d" % (opn, a_, a_, b_), V(a_) + V(b_), V(a_)))
    post(a_)
    o.append(vop("v_mov_b32 v%d, v%d" % (b_, a_), V(a_), V(b_)))
    o.append(vop("v_permlane16_swap_b32 v%d, v%d" % (a_, b_), V(a_) + V(b_), V(a_) + V(b_), 'perm'))

def softmax(tbs, fold=False):
    o = []
    def red(regs, opn, post):
        if len(tbs) == 4: cross_reduce(o, regs, opn, None, post)
        else: cross_reduce2(o, [regs[t] for t in tbs], opn, post)
    for tb in tbs:
        e = [vS(0, tb) + i for i in range(16)]; m = vMX[tb]
        o.append(vop("v_max3_f32 v%d, v%d, v%d, v%d" % (m, e[0], e[1], e[2]), V(e[0]) + V(e[1]) + V(e[2]), V(m)))
        for i in range(3, 15, 2):
            o.append(vop("v_max3_f32 v%d, v%d, v%d, v%d" % (m, m, e[i], e[i + 1]), V(m) + V(e[i]) + V(e[i + 1]), V(m)))
        o.append(vop("v_max_f32 v%d, v%d, v%d" % (m, m, e[15]), V(m) + V(e[15]), V(m)))
    red(vMX, "v_max_f32", (lambda z: None) if fold else (lambda z: o.append(vop("v_mul_f32 v%d, s%d, v%d" % (z, sKAP, z), V(z) + S(sKAP), V(z)))))
    for tb in tbs:
        e = [vS(0, tb) + i for i in range(16)]; m = vMX[tb]; l = vSM[tb]
        for i in range(16):
            if fold: o.append(vop("v_sub_f32 v%d, v%d, v%d" % (e[i], e[i], m), V(e[i]) + V(m), V(e[i])))
            else: o.append(vop("v_fma_f32 v%d, v%d, s%d, -v%d" % (e[i], e[i], sKAP, m), V(e[i]) + V(m) + S(sKAP), V(e[i])))
            o.append(vop("v_exp_f32 v%d, v%d" % (e[i], e[i]), V(e[i]), V(e[i]), 'trans'))
            if i == 1: o.append(vop("v_add_f32 v%d, v%d, v%d" % (l, e[0], e[1]), V(e[0]) + V(e[1]), V(l)))
            elif i > 1: o.append(vop("v_add_f32 v%d, v%d, v%d" % (l, l, e[i]), V(l) + V(e[i]), V(l)))
    red(vSM, "v_add_f32", lambda z: o.append(vop("v_rcp_f32 v%d, v%d" % (z, z), V(z), V(z), 'trans')))
    for tb in tbs:
        base = vS(0, tb); l = vSM[tb]
        for j in range(8):
            o.append(vop("v_mul_f32 v%d, v%d, v%d" % (base + 2 * j, base + 2 * j, l), V(base + 2 * j) + V(l), V(base + 2 * j)))
            o.append(vop("v_mul_f32 v%d, v%d, v%d" % (base + 2 * j + 1, base + 2 * j + 1, l), V(base + 2 * j + 1) + V(l), V(base + 2 * j + 1)))
            o.append(cvt(vP(tb, 0) + j, base + 2 * j, base + 2 * j + 1))
    return o

FLAG = WIMG + 4 * 2048
vFA = 29; vFL = 30; sFL = 41; vMK = [26, 27, 28]; sXC = 48; NPROD = 24; vNW = 24; vNB = 25
NTASK = 72
PUBB = (1, 2, 3, 4, 5)

def at(o, idx, slack=6):
    o.emi = max(0, idx); o.deadline = max(0, idx + slack) * P; return o

class Builder:
    def __init__(self, cfg, nwin, head, wuse=None):
        self.nwin = nwin; self.head = head; self.own = (0, 'c'); self.cnt = {}
        self.cfg = cfg; self.ops = []; self.nm = 0; self.pending = None
        self.wuse = wuse; self.wseq = []; self.wfirst = []; self.wlast = []; self.nw = 0
        self.ev = []; self.seen = set(); self.marks = {}; self.labels = set()
    def add(self, o, own=None):
        own = own or self.own
        c = self.cnt.get(own, 0); self.cnt[own] = c + 1
        o.grp = own + (c,); self.ops.append(o); return o
    def event(self, idx, fn): self.ev.append((idx, len(self.ev), fn)); self.ev.sort(key=lambda e: e[:2])
    def check(self, key, mask, idx, after):
        cfg = self.cfg
        rd = Op("ds_read_b32 v%d, v%d" % (vFL, vFA), 'dsr', V(vFA) + after, V(vFL), deadline=max(0, idx * P - 200)); rd.emi = max(0, idx - 12)
        rf = Op("v_readfirstlane_b32 s%d, v%d" % (sFL, vFL), 'valu', V(vFL), S(sFL), deadline=idx * P)
        if mask & (mask - 1) == 0:
            br = Op("s_bitcmp1_b32 s%d, %d\n    s_cbranch_scc0 L_slow%d\nL_ok%d:" % (sFL, mask.bit_length() - 1, key, key), 'salu', S(sFL), [('BAR', key)], deadline=idx * P + 16)
        else:
            br = Op("s_andn2_b32 s%d, %d, s%d\n    s_cbranch_scc1 L_slow%d\nL_ok%d:" % (sFL, mask, sFL, key, key), 'salu', S(sFL), [('BAR', key)] + S(sFL), deadline=idx * P + 16)
        br.cost = 8
        for o in (rd, rf, br): self.add(o, (0, 'H'))
    def addm(self, o):
        cfg = self.cfg
        while self.ev and self.ev[0][0] <= self.nm: self.ev.pop(0)[2]()
        if self.wuse is not None:
            while self.nw < len(self.wuse) and self.wuse[self.nw][2] <= self.nm:
                q = self.nw; k, first, emi = self.wuse[q]
                r = wread(q, k, deadline=min(first * P - 150, (emi + cfg.wdl) * P)); r.emi = max(0, emi)
                if self.head and first < NM:
                    key = min(k // 12, 6)
                    if key not in self.seen:
                        self.seen.add(key)
                        self.check(key, (1 << key) if key < 6 else 0x3c0, max(0, emi - 2),
                                   [('FS', j) for j in range(5) if key >= PUBB[j]] + ([('FS', 5)] if key == 6 else []))
                    r.reads.append(('BAR', key))
                if self.head and self.nm == 0 and q < 8: r.writes.append('W0G%d' % q); o.reads.append('W0G%d' % q)
                self.add(r, (first // NM, 'w')); self.nw += 1
        self.nm += 1; return self.add(o)
    def w_new(self, k):
        self.wseq.append(k); self.wfirst.append(self.nm); self.wlast.append(self.nm); return len(self.wseq) - 1
    def run_pending(self):
        if self.pending is not None:
            p = self.pending; self.pending = None; p()
    def g3(self, u, tbs):
        for tb in tbs:
            for kb in range(4):
                for uu in ((u - 1, u) if self.cfg.g3c else (u,)):
                    self.addm(mfma(vS(kb, tb), 'a', aXF(self.par, kb, uu), 'v', vYB(tb, uu), first=(uu == 0), tag="G3 u%d" % uu))
        if u == 5:
            for o in softmax(tbs, self.cfg.fold): self.add(o)
    def g1(self, cb, tbs):
        hh = cb & 1
        if self.cfg.chain:
            qs = {}
            for i, tb in enumerate(tbs):
                for s in range(6):
                    if s not in qs: qs[s] = self.w_new(6 * cb + s)
                    self.wlast[qs[s]] = self.nm
                    self.addm(mfma(vACC(hh, tb), 'a', aWR(qs[s]), 'a', aXF(self.par, tb, s), first=(s == 0), tag="G1 cb%d s%d" % (cb, s)))
                if i == 1: self.run_pending()
        else:
          for s in range(6):
            q = self.w_new(6 * cb + s)
            for tb in tbs:
                self.wlast[q] = self.nm
                self.addm(mfma(vACC(hh, tb), 'a', aWR(q), 'a', aXF(self.par, tb, s), first=(s == 0), tag="G1 cb%d s%d" % (cb, s)))
            if s == (2 if len(tbs) == 4 else 4): self.run_pending()
        for tb in tbs:
            for j in range(2):
                self.add(cvt(vYB(tb, cb // 2) + 2 * hh + j, vACC(hh, tb) + 2 * j, vACC(hh, tb) + 2 * j + 1))
        if hh == 1 and (not self.cfg.g3c or cb % 4 == 3): self.pending = (lambda u=cb // 2: self.g3(u, tbs))
    def g2(self, cb):
        st = cb & 1
        if self.cfg.chain:
            qs = {}
            for kb in range(4):
                for s in range(6):
                    if s not in qs: qs[s] = self.w_new(72 + 6 * cb + s)
                    self.wlast[qs[s]] = self.nm
                    self.addm(mfma(vACC(st, kb), 'a', aXF(self.par, kb, s), 'a', aWR(qs[s]), first=(s == 0), tag="G2 cb%d s%d" % (cb, s)))
                if kb == 1: self.run_pending()
        else:
          for s in range(6):
            q = self.w_new(72 + 6 * cb + s)
            for kb in range(4):
                self.wlast[q] = self.nm
                self.addm(mfma(vACC(st, kb), 'a', aXF(self.par, kb, s), 'a', aWR(q), first=(s == 0), tag="G2 cb%d s%d" % (cb, s)))
            if s == 2: self.run_pending()
        for v in range(2):
            for j in range(4):
                src = vACC(st, 2 * v + j // 2) + 2 * (j % 2)
                self.add(cvt(vVB(cb, v) + j, src, src + 1))
    def g4(self, m, tbs, sets):
        cfg = self.cfg; n = self.n
        for tb, ob in zip(tbs, sets):
            for v, q in ([(v, q) for q in range(4) for v in range(2)] if cfg.chain else [(v, q) for v in range(2) for q in range(4)]):
                    self.addm(mfma(ob + 4 * q, 'v', vP(tb, v), 'v', vVB(4 * m + q, v), first=(v == 0), tag="G4 m%d tb%d" % (m, tb)))
            for r in range(4):
                self.add(cvt(vH(m, tb) + 2 * r, ob + r, ob + 4 + r))
                self.add(cvt(vH(m, tb) + 2 * r + 1, ob + 8 + r, ob + 12 + r))
        stt = [t0 + i * dt for (c, t0, dt) in (cfg.sttB if n & 1 else cfg.sttA) for i in range(c)]
        assert len(stt) == 48
        stm = cfg.stmB if n & 1 else cfg.stmA
        ste = [t0 + i * dt for (c, t0, dt) in cfg.stE for i in range(c)]
        for tb in tbs:
            for r in range(4):
                d = vH(m, tb) + 2 * r
                mk = lambda row: Op("buffer_store_dwordx2 %s, v%d, s[%d:%d], s%d offen offset:%d%s" % (rtxt('v', d, 2), vSTO, sOUT, sOUT + 3, row, r * 384 + m * 128, cfg.stflag), 'vst1',
                                    reads=V(d, 2) + V(vSTO) + S(sOUT, 4) + S(row))
                k = 16 * m + 4 * tb + r
                early = n & 1 and k < len(ste)
                if early: self.add(at(mk(sSTE + tb), n * NM + int(ste[k])), (n, 'e'))
                self.add(at(mk(sST(n & 1) + 2 * tb), n * NM + int(stt[16 * stm.index(m) + 4 * tb + r])), (n, 'L') if early else None)
    def rows(self, base, k, own):
        for rho in range(0, 8, 2):
            self.add(Op("s_add_u32 s%d, s%d, %d" % (base + rho, sWIN, k * WSTEP(self.cfg) + rho * ROWB), 'salu', S(sWIN), S(base + rho)), own)
    def plan_x(self, n):
        cfg = self.cfg; par = n & 1
        for j in range(12):
            tl = (n - 2) * NM + (cfg.ldtA, cfg.ldtB)[par][j]
            if n == 1: tl = max(tl, cfg.hd_x0 + j * cfg.hd_xstep) if tl >= cfg.R else cfg.hd_x0 + j * cfg.hd_xstep
            ts = (n - 1) * NM + (cfg.stgA, cfg.stgB)[par][j]
            def ld(j=j, tl=tl):
                if j == 0: self.rows(sLD, 1 if n == 1 else 2 + par, (n, 'r'))
                for e in range(2): self.add(at(xload(par, j, e, cfg), tl), (n, 'l'))
            def sg(j=j, ts=ts):
                for x in staging(par, j): self.add(at(x, ts, cfg.stgd), (n, 's'))
            if tl < self.nwin * NM: self.event(tl, ld)
            if ts < self.nwin * NM: self.event(ts, sg)
    def plan_head(self):
        cfg = self.cfg
        pubs = [(cfg.fm[0], 0, 12, vMK[0]), (cfg.fm[1], 0, 0, vMK[1]), (cfg.f1[0], 1, 24, vMK[0]), (cfg.f1[1], 1, 12, vMK[1]), (cfg.f1[2], 1, 0, vMK[2])]
        self.pubs = pubs
        for k, (tau, w, c, v) in enumerate(pubs):
            o = Op("s_cmp_eq_u32 s49, %d\n    s_cbranch_scc0 L_pub%d\n    s_waitcnt vmcnt(@%d+%d@)\n    ds_or_b32 v%d, v%d\nL_pub%d:" % (w, k, k, c, vFA, v, k), 'salu',
                   V(vFA) + V(v), [('FS', k)])
            o.cost = 8; self.add(at(o, tau, 4), (0, 'H'))
        def nload():
            keep = self.own; self.own = (0, 'H')
            NR = lambda k: 128 + 4 * k if k < 16 else 224 + 4 * (k - 16)
            for k in range(18):
                t = cfg.n0 + k * cfg.nstep
                if k % 4 == 0: self.add(at(Op("s_add_u32 s61, s60, %d" % (k * 1024), 'salu', S(60), S(61)), t - 2))
                o = Op("buffer_load_dwordx4 %s, v1, s[52:55], s61 offen offset:%d%s" % (rtxt('v', NR(k), 4), (k % 4) * 1024, cfg.wflag), 'vld',
                       V(1) + S(52, 4) + S(61) + [('BAR', 0)], V(NR(k), 4))
                o.lat = cfg.nlat * P; self.add(at(o, t))
            for k in range(18):
                for h in range(2):
                    self.add(at(Op("ds_write_b64 v%d, %s offset:%d" % (vNW, rtxt('v', NR(k) + 2 * h, 2), k * 1024 + 8 * h), 'dsw2',
                                   V(vNW) + V(NR(k) + 2 * h, 2), ['NW%d%d' % (k, h)]), cfg.n0 + k * cfg.nstep + cfg.nlat, 40))
            self.add(at(Op("ds_or_b32 v%d, v%d" % (vFA, vNB), 'dsw2', V(vFA) + V(vNB) + ['NW%d%d' % (k, h) for k in range(18) for h in range(2)], [('FS', 5)]),
                        cfg.n0 + 17 * cfg.nstep + cfg.nlat, 50))
            self.own = keep
        self.event(1, nload)
    def build(self):
        cfg = self.cfg
        if self.head: self.plan_head()
        for n in range(1, self.nwin + 2): self.plan_x(n)
        ALL = [0, 1, 2, 3]; SETS = [64, 80, 96, 112]
        for n in range(self.nwin):
            self.n = n; self.par = n & 1; self.own = (n, 'c')
            if n & 1 == 0:
                self.add(Op("s_add_u32 s%d, s%d, %d" % (sWIN, sWIN, 2 * WSTEP(cfg)), 'salu', S(sWIN), S(sWIN)))
                self.event(n * NM + 660, lambda n=n: self.add(at(Op("s_mov_b32 s%d, s19" % (sX + 2), 'salu', S(19), S(sX + 2)), n * NM + 660), (n, 'x')))
            self.event(n * NM + (400 if n & 1 else 600), lambda n=n: self.rows(sST(n & 1), n & 1, (n, 't')))
            if n & 1:
                def erows(n=n):
                    for tb in range(4):
                        self.add(Op("s_add_u32 s%d, s%d, s19" % (sSTE + tb, sST(1) + 2 * tb), 'salu', S(sST(1) + 2 * tb) + S(19), S(sSTE + tb)), (n, 't'))
                if cfg.stE: self.event(n * NM + 410, erows)
                for cb in range(12): self.g1(cb, [0, 1])
                for cb in range(12): self.g1(cb, [2, 3])
                for cb in range(4): self.g2(cb)
                self.g4(0, [0, 1], [192, 208])
                for cb in (4, 5): self.g2(cb)
                self.g4(0, [2, 3], [64, 80])
                for cb in (6, 7): self.g2(cb)
                self.g4(1, ALL, [64, 80, 192, 208])
                for cb in range(8, 12): self.g2(cb)
                self.g4(2, ALL, SETS)
            else:
                for cb in range(12): self.g1(cb, ALL)
                for cb in range(12): self.g2(cb)
                for m in range(3): self.g4(m, ALL, SETS)
            assert self.nm == (n + 1) * NM
        assert not self.ev, self.ev
        return self.ops

def WSTEP(cfg): return DELTA if cfg.amap == 0 else 2 * 1572864
def build_all(cfg, nwin, head):
    global YB0, W32
    W32 = cfg.w32
    YB0 = 192 if cfg.g3c else 208
    dry = Builder(cfg, nwin + 1, False); dry.build()
    use = []
    for q, (k, first) in enumerate(zip(dry.wseq, dry.wfirst)):
        s_ = k % 6; emi = first - s_ - cfg.wlead + cfg.wsp * s_
        if q >= RING: emi = max(emi, dry.wlast[q - RING] + 1)
        if use: emi = max(emi, use[-1][2])
        assert q < RING or dry.wlast[q - RING] < emi <= first - 8, (q, dry.wlast[q - RING], emi, first)
        use.append((k, first, emi))
    b = Builder(cfg, nwin, head, use)
    return b.build(), b

def cut_at(ops, n):
    c = 0
    for i, o in enumerate(ops):
        if o.kind == 'mfma':
            if c == n: return i
            c += 1
    return len(ops)

def make_stream(cfg):
    R = cfg.R
    ops, B = build_all(cfg, 8, False)
    order, stats = schedule(ops, **SCHED)
    c0, c1, c2 = (cut_at(order, k * NM + R) for k in (2, 4, 6))
    assert [o.text for o in order[c0:c1]] == [o.text for o in order[c1:c2]], "schedule is not periodic"
    body = order[c1:c2]; t0 = body[0].t
    period = order[c2].t - t0
    before = set((o.grp[0] - 4,) + o.grp[1:] for o in order[:c1] if o.grp[0] >= 4 and not (o.grp[0] == 4 and o.grp[1] in 'lrs'))
    ex = cut_at(body, 2 * NM - R)
    tail = [o for o in order[c1 + ex:] if o.grp[0] == 5 and o.grp[1] != 'L']
    assert not any(o.grp[0] == 5 and o.grp[1] == 'L' for o in body[:ex]) and not any(o.grp[1] == 'e' for o in body[ex:])
    assert all(o.grp[0] >= 5 for o in order[c1 + ex:]) and sum(o.kind == 'vst1' for o in tail) + sum(o.grp[0] == 5 and o.kind == 'vst1' for o in body[:ex]) == 48 and all(o.kind in ('valu', 'vst1') for o in tail), [o.text for o in tail if o.kind not in ('valu', 'vst1')]
    hops, HB = build_all(cfg, 2, True)
    hops = [o for o in hops if o.grp[1] == 'H' or o.grp in before]
    assert len([o for o in hops if o.grp[1] != 'H']) == len(before), (len(hops), len(before))
    horder, hstats = schedule(hops, **SCHED)
    sys.stderr.write("head %s, period %d, tail %d ops\n" % ({k: v for k, v in hstats.items() if k != 'late'}, period, len(tail)))
    for o in body: o.t -= t0
    def clone(o):
        c = Op(o.text, o.kind, o.reads, o.writes, tag=o.tag, creads=o.creads, passes=o.passes); c.grp = o.grp; return c
    tail = [clone(o) for o in tail]
    wr = set(r for o in tail for r in o.writes)
    tail.sort(key=lambda o: 1 if o.kind == 'valu' else (2 if wr & set(o.reads) else 0))
    parts = {1: body[:ex], 2: body[ex:]}
    def run(reqs, collect):
        st = State(); hl = finalize(horder, st, exact=True)
        out = {}; tb = hstats['end']
        for key in (1, 2, 1):
            c = [] if collect is not None else None
            ln = finalize(parts[key], st, tbase=tb, reqs=(reqs.get(key) if reqs else None), collect=c, exact=True)
            if collect is not None: collect.setdefault(key, []).append(c)
            out.setdefault(key, []).append(ln)
            if key == 2: tb += period
        return st, hl, out
    reqs = None
    for it in range(4):
        col = {}; run(reqs, col)
        reqs = {k: (merge_reqs(v[0], v[1]) if len(v) > 1 else v[0]) for k, v in col.items()}
    st, hl, out = run(reqs, None)
    assert out[1][0] == out[1][1], "waits are not stable"
    st.time = 10 ** 9
    tl = finalize(tail, st)
    return hl, out[1][0], out[2][0], tl

def raw_setup(a):
    a("""    s_cmp_ge_u32 s60, 36
    s_cselect_b32 s65, 36, 0
    s_cselect_b32 s97, 768, 0
    s_sub_u32 s65, s60, s65           ; t
    s_mul_i32 s66, s65, 43
    s_lshr_b32 s66, s66, 8            ; u = t / 6
    s_mul_i32 s67, s66, 6
    s_sub_u32 s67, s65, s67           ; s
    s_max_u32 s64, s49, 1
    s_mul_i32 s64, s64, 12288
    s_mul_i32 s61, s66, 36864
    s_add_u32 s61, s61, 384
    s_mul_i32 s62, s67, 36864
    s_add_u32 s62, s62, s97
    s_bitcmp1_b32 s63, 1
    s_cselect_b32 s61, s62, s61
    s_cselect_b32 s64, 0, s64
    s_cselect_b32 s97, 0, s97
    s_movk_i32 s62, 128
    s_movk_i32 s65, 9216
    s_mov_b32 s96, 32
    v_lshrrev_b32 v16, 3, v0
    v_and_b32 v17, 7, v0
    v_bfe_u32 v18, v0, 4, 1
    v_xor_b32 v17, v17, v18
    v_lshlrev_b32 v17, 4, v17
    v_mul_u32_u24 v16, 1152, v16
    s_cmp_eq_u32 s97, 0
    s_mov_b32 s18, 221184
    s_cbranch_scc1 L_raw_rows
    s_mov_b32 s18, 73728
    s_lshl_b32 s61, s66, 6
    s_movk_i32 s62, 6144
    s_movk_i32 s65, 18432
    s_mov_b32 s96, 0
    v_lshrrev_b32 v16, 2, v0
    v_mul_u32_u24 v16, 384, v16
    v_and_b32 v17, 3, v0
    v_lshlrev_b32 v17, 4, v17
L_raw_rows:""")
def raw_issue(a):
    a("""    s_cmp_eq_u32 s97, 0
    s_cselect_b32 s16, s6, s20
    s_cselect_b32 s17, s7, s21
    s_mov_b32 s19, 0x00020000
    s_mov_b32 m0, s64
    s_mov_b32 s97, 4
L_raw_lp:
    v_add_u32 v18, v16, v17
    s_add_u32 s42, s61, s62
    buffer_load_dwordx4 v18, s[16:19], s61 offen lds
    s_add_u32 m0, m0, 1024
    s_add_u32 s41, s42, s62
    buffer_load_dwordx4 v18, s[16:19], s42 offen lds
    s_add_u32 m0, m0, 1024
    s_add_u32 s61, s61, s65
    buffer_load_dwordx4 v18, s[16:19], s41 offen lds
    s_add_u32 m0, m0, 1024
    s_and_b32 s42, s97, 1
    s_mul_i32 s42, s42, s96
    s_lshl_b32 s42, s42, 1
    s_add_u32 s42, s42, s96
    v_xor_b32 v17, s42, v17
    s_sub_u32 s97, s97, 1
    s_cmp_lg_u32 s97, 0
    s_cbranch_scc1 L_raw_lp""")

def produce(a, cfg, waitA):
    a("""    s_mul_i32 s61, s66, 12
    s_add_u32 s61, s61, s67
    s_lshl_b32 s61, s61, 10           ; fragment (2u)*6 + s
    s_add_u32 s62, s61, 6144
    v_mov_b32 v27, v1
    v_bfe_u32 v22, v0, 2, 2           ; i >> 2
    v_and_b32 v23, 3, v0              ; i & 3
    v_lshrrev_b32 v26, 4, v0          ; g
    s_cmp_ge_u32 s60, 36
    s_cbranch_scc0 L_prod_A
    v_mul_u32_u24 v27, 6144, v23
    v_lshlrev_b32 v24, 8, v26
    v_lshlrev_b32 v25, 4, v22
    v_add3_u32 v27, v27, v24, v25
    s_lshr_b32 s61, s66, 1
    s_mul_i32 s61, s61, 24576
    s_and_b32 s62, s66, 1
    s_lshl_b32 s62, s62, 7
    s_add_u32 s61, s61, s62
    s_lshl_b32 s62, s67, 10
    s_add_u32 s61, s61, s62
    s_add_u32 s61, s61, 73728
    s_add_u32 s62, s61, 64
L_prod_A:
    v_mul_u32_u24 v24, 3072, v22
    v_lshl_add_u32 v24, v23, 7, v24
    v_bfe_u32 v25, v0, 1, 1
    v_lshl_add_u32 v25, v22, 1, v25   ; swizzle
    v_xor_b32 v25, v25, v26
    v_lshl_add_u32 v24, v25, 4, v24
    v_xor_b32 v25, 64, v24
    v_lshl_add_u32 v26, v26, 3, v22
    v_lshlrev_b32 v26, 6, v26
    v_lshl_add_u32 v26, v23, 3, v26
    v_add_u32 v26, s64, v26
    s_waitcnt vmcnt(0)""")
    waitA()
    if cfg.stamp: a("    s_memtime s[72:73]")
    def frags(base):
        for km in range(6):
            for t in range(2):
                d = base + 24 * t + 4 * km
                a("    ds_read_b128 v[%d:%d], v%d offset:%d" % (d, d + 3, 24 + (km & 1), (km >> 1) * 1024 + t * 512))
    frags(32)
    a("""    s_cmp_ge_u32 s60, 36
    s_cbranch_scc1 L_prod_N2
    v_add_u32 v24, s64, v24
    v_add_u32 v25, s64, v25""")
    frags(80)
    a("    s_branch L_prod_mm\nL_prod_N2:")
    for km in range(6):
        for h in range(2):
            for q in range(2):
                d = 80 + 24 * h + 4 * km + 2 * q
                a("    ds_read_b64_tr_b16 v[%d:%d], v26 offset:%d" % (d, d + 1, (32 * km + 4 * q) * 64 + 32 * h))
    a("""L_prod_mm:
    s_cmp_ge_u32 s60, 36
    s_cselect_b32 s65, 1.0, s%d       ; scale * log2(e) goes into M
    s_waitcnt lgkmcnt(0)""" % sKAP)
    for h in range(2):
        for km in range(6):
            for t in range(2):
                d = 128 + 8 * h + 4 * t
                c = "0" if km == 0 else "v[%d:%d]" % (d, d + 3)
                a("    v_mfma_f32_16x16x32_bf16 v[%d:%d], v[%d:%d], v[%d:%d], %s" % (d, d + 3, 32 + 24 * t + 4 * km, 35 + 24 * t + 4 * km, 80 + 24 * h + 4 * km, 83 + 24 * h + 4 * km, c))
    for h in range(2):
        if h == 1: a("    s_nop 7")
        if cfg.fold:
            for j in range(8): a("    v_mul_f32 v%d, s65, v%d" % (128 + 8 * h + j, 128 + 8 * h + j))
        for j in range(4):
            a("    v_cvt_pk_bf16_f32 v%d, v%d, v%d" % (144 + 4 * h + j, 128 + 8 * h + 2 * j, 129 + 8 * h + 2 * j))
        a("    buffer_store_dwordx4 v[%d:%d], v27, s[52:55], s%d offen" % (144 + 4 * h, 147 + 4 * h, 61 + h))

GUARD = "    s_sub_u32 s43, s43, 1\n    s_cbranch_scc1 L_end"
def prologue_roles(a, cfg):
    def setbit(v): a("    ds_or_b32 v%d, v%d" % (vFA, v))
    def setimm(bit):
        a("    v_mov_b32 v%d, %d" % (vFL, 1 << bit)); setbit(vFL)
    def waitmask(lab, sreg):
        a(lab + ":")
        a(GUARD)
        a("    ds_read_b32 v%d, v%d" % (vFL, vFA))
        a("    s_waitcnt lgkmcnt(0)")
        a("    v_readfirstlane_b32 s%d, v%d" % (sFL, vFL))
        a("    s_nop 1")
        a("    s_and_b32 s42, s%d, %s" % (sFL, sreg))
        a("    s_cmp_eq_u32 s42, %s" % sreg)
        a("    s_cbranch_scc0 %s" % lab)
    def wdma(n, first=0):
        for q in range(3 * first, 3 * (first + n)):
            a("    s_add_u32 s61, s60, %d" % (q * 4096))
            a("    s_mov_b32 m0, s61")
            a("    s_nop 0")
            for j in range(4):
                a("    buffer_load_dwordx4 v1, s[52:55], s61 offen offset:%d%s lds" % (j * 1024, cfg.wflag))
    xl = [xload(0, j, e, cfg).text for j in range(12) for e in range(2)]
    def land(nblk, younger0=0):
        younger = younger0
        a("    v_mov_b32 v16, v4\n    v_mov_b32 v17, v5\n    v_mov_b32 v18, v6")
        for k in range(24):
            if k == cfg.pace or k % 2 == 1: a("    s_waitcnt vmcnt(%d)" % (23 - k + younger))
            if k == cfg.pace: setbit(31)
            if k % 2 == 1:
                for o in staging(0, k // 2, True): a("    " + o.text)
            if k % 4 == 3 and k // 4 < nblk: wdma(1, k // 4); younger += 12
    def arrive(lab):
        if cfg.stamp: a("    s_memtime s[92:93]")
        a("""    v_mov_b32 v32, 1
    s_lshr_b32 s60, s2, 3
    s_add_u32 s60, s60, s%d
    v_mov_b32 v33, s60
    s_mov_b64 exec, 1
    ds_add_rtn_u32 v34, v%d, v32 offset:4
    s_waitcnt lgkmcnt(0)
    v_readfirstlane_b32 s61, v34
    s_nop 1
    s_cmp_eq_u32 s61, 2
    s_cbranch_scc0 %s
    buffer_store_byte v32, v33, s[56:59], 0 offen
    v_mov_b32 v32, 0x400000
    ds_or_b32 v%d, v32
%s:
    s_mov_b64 exec, -1""" % (sXC, vFA, lab, vFA, lab))
    a("    s_lshl_b32 s42, 4096, s49\n    v_mov_b32 v31, s42")
    a("    s_cmp_eq_u32 s49, 0")
    a("    s_cbranch_scc1 L_w0")
    a("    s_cmp_lt_u32 s2, %d" % (NPROD * 8))
    a("    s_cbranch_scc0 L_noprod")
    a("L_prod:")
    def waitA():
        a("    s_bitcmp1_b32 s63, 0\n    s_cbranch_scc1 L_gotA")
        waitmask("L_wA", "0x100000")
        a("L_gotA:")
    produce(a, cfg, waitA)
    a("    s_bitcmp1_b32 s63, 0\n    s_cbranch_scc1 L_fb_next")
    a("    s_cmp_eq_u32 s49, 1")
    a("    s_cbranch_scc0 L_p23")
    if cfg.stamp: a("    s_memtime s[94:95]")
    for l in xl: a("    " + l)
    a("    s_waitcnt vmcnt(24)")
    arrive("L_nl1")
    land(0)
    a("    s_branch L_w1go")
    a("L_p23:")
    a("    s_waitcnt vmcnt(0)")
    arrive("L_nl2")
    a("L_noprod:")
    a("    s_lshl_b32 s60, 2048, s49")
    if cfg.gate:
        a("    s_cmp_lt_u32 s2, %d\n    s_cselect_b32 s61, 0x400000, 0    ; this workgroup's flag byte is on its way\n    s_or_b32 s60, s60, s61" % (NPROD * 8))
    if cfg.quiet:
        a("    s_cmp_ge_u32 s49, %d\n    s_cselect_b32 s61, 0x200000, 0\n    s_or_b32 s60, s60, s61" % cfg.quiet)
    waitmask("L_wpace", "s60")
    if cfg.stamp: a("    s_memtime s[94:95]")
    for l in xl: a("    " + l)
    land(0)
    a("L_w1go:")
    if cfg.stamp: a("    s_memtime s[90:91]")
    a("    s_cmp_eq_u32 s49, 1")
    a("    s_cbranch_scc0 L_enter")
    waitmask("L_wgo", "0x200000")
    if cfg.stamp: a("    s_memtime s[88:89]")
    a("    s_mov_b32 s60, 36864")
    wdma(3)
    a("    v_mov_b32 v%d, 8\n    v_mov_b32 v%d, 16\n    v_mov_b32 v%d, 32" % tuple(vMK))
    a("    s_branch L_enter")
    a("L_w0:")
    if cfg.stamp: a("    s_memtime s[94:95]")
    a("    s_waitcnt vmcnt(24)"); setimm(20)
    land(0)
    if cfg.stamp: a("    s_memtime s[90:91]")
    a("""L_poll0:
    s_mov_b32 s61, 0
    v_min_u32 v33, 5, v0
    v_lshlrev_b32 v33, 2, v33
    s_mov_b32 s62, 0x01010101
    v_mov_b32 v34, 0
L_poll:
    buffer_load_dword v34, v33, s[56:59], s%d offen%s      ; samples return in order; each flag byte only ever goes 0 -> 1
    s_add_u32 s61, s61, 1
    s_sleep %d
    v_cmp_ne_u32 vcc, s62, v34
    s_nop 4
    s_cbranch_vccz L_go
    s_cmp_lt_u32 s61, %d
    s_cbranch_scc1 L_poll
    s_waitcnt vmcnt(0)
    s_branch L_fb
L_go:""" % (sXC, cfg.pollflag, cfg.psleep, cfg.polls))
    if cfg.stamp: a("    s_memtime s[88:89]")
    a("    s_mov_b32 s60, 0")
    wdma(1)
    setimm(21)
    if cfg.m0first: a("    s_waitcnt vmcnt(0)"); setimm(0)
    wdma(2, 1)
    a("    v_mov_b32 v%d, 2\n    v_mov_b32 v%d, 4" % (vMK[0], vMK[1]))
    if not cfg.m0first: a("    s_waitcnt vmcnt(24)"); setimm(0)
    a("L_enter:")
    a("    v_mov_b32 v16, v4\n    v_mov_b32 v17, v5\n    v_mov_b32 v18, v6")
    a("    s_mul_i32 s60, s49, 18432\n    s_add_u32 s60, s60, 73728\n    v_add_u32 v%d, s60, v1\n    s_lshl_b32 s61, 64, s49\n    v_mov_b32 v%d, s61" % (vNW, vNB))
    a("    s_waitcnt lgkmcnt(0)")

def fallback(a):
    a("""L_fb:
    s_mov_b32 s60, 0
    s_cmp_lt_u32 s2, %d               ; the sibling waves must be done with the LDS scratch
    s_cbranch_scc0 L_fb_task
L_fbw:
%s
    ds_read_b32 v34, v%d offset:4
    s_waitcnt lgkmcnt(0)
    v_readfirstlane_b32 s61, v34
    s_nop 1
    s_cmp_eq_u32 s61, 3
    s_cbranch_scc0 L_fbw
L_fb_task:
    s_mov_b32 s63, 3
    s_branch L_raw
L_fb_raw:
    s_bitcmp1_b32 s63, 1
    s_mov_b32 s63, 1
    s_cbranch_scc1 L_raw
    s_branch L_prod
L_fb_next:
    s_waitcnt vmcnt(0)
    s_add_u32 s60, s60, 1
    s_cmp_lt_u32 s60, %d
    s_cbranch_scc1 L_fb_task
    s_branch L_go""" % (NPROD * 8, GUARD, vFA, NTASK))

def slow_paths(a):
    for key in range(7):
        a("L_slow%d:" % key)
        a(GUARD)
        a("    ds_read_b32 v%d, v%d" % (vFL, vFA))
        a("    s_waitcnt lgkmcnt(0)")
        a("    v_readfirstlane_b32 s%d, v%d" % (sFL, vFL))
        a("    s_nop 1")
        a("    s_andn2_b32 s%d, %d, s%d" % (sFL, (1 << key) if key < 6 else 0x3c0, sFL))
        a("    s_cbranch_scc1 L_slow%d" % key)
        a("    s_branch L_ok%d" % key)

SCHED = dict(mfma_period=P, dsw_gap=56, vst1_gap=24, short=True)

def main_kernel(cfg):
    L = []
    a = L.append
    K = NAME + "_kernel"
    a(".globl %s\n.p2align 8\n.type %s,@function\n%s:" % (K, K, K))
    a("""    s_cmp_ge_u32 s2, 256
    s_cbranch_scc1 L_end""")
    if cfg.stamp: a("    s_memtime s[100:101]\n    s_memrealtime s[70:71]")
    a("""    s_load_dwordx4 s[4:7], s[0:1], 0        ; x, wqkv
    s_load_dwordx4 s[20:23], s[0:1], 16
    s_load_dwordx4 s[56:59], s[0:1], 32
    v_lshrrev_b32 v16, 6, v0
    v_and_b32 v0, 63, v0
    s_getpc_b64 s[44:45]
L_pc_ref:
    v_readfirstlane_b32 s49, v16            ; wave
    s_mov_b32 s46, L_code_end-L_pc_ref
    s_mov_b32 s47, 0x00020000
    v_lshlrev_b32 v7, 6, v0
    s_lshr_b32 s60, s2, 3
""")
    if cfg.pf0 == 0:
        a("    s_and_b32 s42, s60, 3\n    s_lshl_b32 s42, s42, 2\n    s_add_u32 s42, s42, s49\n    s_lshl_b32 s42, s42, 12\n    buffer_load_dword v8, v7, s[44:47], s42 offen")
    else:
        a("    s_lshl_b32 s42, s60, 2\n    s_add_u32 s42, s42, s49\n    s_lshl_b32 s42, s42, 7\n    v_lshrrev_b32 v8, 1, v0\n    v_and_b32 v7, 1, v0\n    v_lshlrev_b32 v7, 6, v7\n    v_lshl_add_u32 v8, v8, 14, v7\n    buffer_load_dword v8, v8, s[44:47], s42 offen")
    a("""    s_cmp_lt_u32 s60, %d
    s_cbranch_scc0 L_setup
    s_cmp_ge_u32 s60, 12
    s_cselect_b32 s61, 12, 0
    s_cselect_b32 s62, 36, 0
    s_sub_u32 s61, s60, s61                 ; r
    s_and_b32 s64, s61, 1
    s_mul_i32 s64, s64, 3
    s_max_u32 s65, s49, 1
    s_add_u32 s64, s64, s65
    s_sub_u32 s64, s64, 1                   ; u
    s_mul_i32 s64, s64, 6
    s_lshr_b32 s61, s61, 1                  ; s
    s_add_u32 s60, s64, s61
    s_add_u32 s60, s60, s62                 ; task
    s_cmp_eq_u32 s49, 0
    s_cselect_b32 s63, 2, 0
L_raw:""" % NPROD)
    raw_setup(a)
    if cfg.stamp: a("    s_memtime s[72:73]")
    a("    s_waitcnt lgkmcnt(0)")
    if cfg.stamp: a("    s_memtime s[92:93]")
    raw_issue(a)
    a("    s_bitcmp1_b32 s63, 0\n    s_cbranch_scc1 L_fb_raw")
    if cfg.stamp: a("    s_memtime s[98:99]")
    a("""L_setup:
    s_mov_b32 s43, 0x400000
    v_lshlrev_b32 v1, 4, v0                 ; lane*16
    v_add_u32 v2, 0x10000, v1
    v_add_u32 v3, 0x20000, v1
    v_lshrrev_b32 v16, 3, v0
    v_and_b32 v17, 7, v0
    v_lshrrev_b32 v18, 4, v0
    v_xor_b32 v17, v17, v18
    v_lshlrev_b32 v17, 4, v17
    v_mul_u32_u24 v16, 384, v16
    v_add_u32 v9, v16, v17
    v_xor_b32 v10, 64, v9
    v_add_u32 v10, 196608, v10
    s_lshl_b32 s52, s49, 11
    s_add_u32 s52, s52, 147456
    v_lshlrev_b32 v16, 3, v0
    v_add_u32 v4, s52, v16
    v_and_b32 v16, 15, v0                   ; i
    v_lshrrev_b32 v17, 4, v0                ; g
    v_lshrrev_b32 v18, 1, v16
    v_xor_b32 v18, v18, v17
    v_lshlrev_b32 v18, 3, v18
    v_lshl_add_u32 v18, v16, 6, v18
    v_add_u32 v5, s52, v18
    v_xor_b32 v6, 32, v5
    v_lshrrev_b32 v16, 5, v0                ; g>>1
    v_mul_u32_u24 v16, 196608, v16
    v_lshrrev_b32 v17, 4, v0
    v_and_b32 v17, 1, v17
    v_mul_u32_u24 v17, 1536, v17
    v_and_b32 v18, 15, v0
    v_lshlrev_b32 v18, 3, v18
    v_add3_u32 v11, v16, v17, v18
    s_nop 0""")
    if cfg.amap == 0:
        a("    s_lshr_b32 s53, s2, 4\n    s_and_b32 s54, s2, 15")
    else:
        a("    s_and_b32 s53, s2, 7\n    s_lshl_b32 s53, s53, 3\n    s_lshr_b32 s54, s2, 7\n    s_add_u32 s53, s53, s54\n    s_lshr_b32 s54, s2, 3\n    s_and_b32 s54, s54, 15")
    a("""    s_mul_i32 s53, s53, 1572864
    s_lshl_b32 s54, s54, 2
    s_add_u32 s54, s54, s49
    s_mul_i32 s54, s54, 3072
    s_add_u32 s53, s53, s54""")
    for rho in range(0, 8, 2):
        a("    s_add_u32 s%d, s53, %d" % (sLD + rho, rho * ROWB))
    a("    v_mov_b32 v%d, %d\n    v_mov_b32 v30, 0\n    v_mov_b32 v31, 0\n    ds_write_b64 v%d, v[30:31]" % (vFA, FLAG, vFA))
    a("    s_getreg_b32 s%d, hwreg(HW_REG_XCC_ID, 0, 3)" % sXC)
    a("    s_waitcnt lgkmcnt(0)")
    a("    s_mov_b32 s8, s4\n    s_mov_b32 s9, s5\n    s_mov_b32 s10, %d\n    s_mov_b32 s11, 0x00020000" % XBYTES)
    if not cfg.x0pre: a("    s_barrier")
    a("    s_cmp_eq_u32 s49, 0\n    s_cbranch_scc0 L_nox0")
    for j in range(12):
        for e in range(2): a("    " + xload(0, j, e, cfg).text)
    a("L_nox0:")
    if cfg.x0pre: a("    s_barrier")
    a("    s_mov_b32 s3, s53") if not cfg.stamp else a("    s_mov_b32 s99, s53")
    a("    s_mov_b32 s12, s22\n    s_mov_b32 s13, s23\n    s_mov_b32 s14, %d\n    s_mov_b32 s15, 0x00020000" % XBYTES)
    a("    s_mov_b32 s%d, %s" % (sKAP, f32hex(KAPPA)))
    a("    s_mov_b32 s50, s58\n    s_mov_b32 s51, s59")
    a("    s_mov_b32 s58, 256\n    s_mov_b32 s59, 0x00020000")
    if cfg.stamp:
        a("    s_mov_b64 s[22:23], s[70:71]\n    s_mov_b32 s3, s98")
        a("    s_add_u32 s68, s50, 0x300000\n    s_addc_u32 s69, s51, 0\n    s_mov_b32 s70, 0x200000\n    s_mov_b32 s71, 0x00020000")
        a("    s_lshl_b32 s98, s2, 2\n    s_add_u32 s98, s98, s49\n    s_lshl_b32 s98, s98, 7")
    a("    s_mul_i32 s52, s%d, %d\n    s_add_u32 s52, s50, s52\n    s_addc_u32 s53, s51, 0\n    s_mov_b32 s54, %d\n    s_mov_b32 s55, 0x00020000" % (sXC, WIMG, WIMG))
    a("    s_lshl_b32 s%d, s%d, 5" % (sXC, sXC))
    prologue_roles(a, cfg)
    a("    s_sub_u32 s%d, s%d, %d" % (sWIN, 99 if cfg.stamp else 3, 2 * WSTEP(cfg)))
    a("    s_mov_b32 s19, %d\n    s_mov_b32 s18, 0" % XBYTES)
    for rho in range(0, 8, 2): a("    s_mov_b32 s%d, %d" % (sST(1) + rho, XBYTES))
    hl, b1, b2, tl = make_stream(cfg)
    import re as _re
    if cfg.abl:
        b1 = [l for l in b1 if not _re.search(cfg.abl, l)]; b2 = [l for l in b2 if not _re.search(cfg.abl, l)]
    nv = 0; out = []
    for l in hl:
        m = _re.search(r"@(\d+)\+(\d+)@", l)
        if m: l = l.replace(m.group(0), str(min(63, int(m.group(2)) + nv)))
        if "buffer_" in l: nv += 1
        out.append(l)
    hl = out
    txt = "\n".join(hl)
    assert all(txt.index("L_pub%d:" % k) < txt.index("L_slow%d" % b) for k, b in enumerate(PUBB)) and txt.index("ds_or_b32 v%d, v%d" % (vFA, vNB)) < txt.index("L_slow6")
    def itstamp(slot, bypass=False):
        r = "    s_memtime s[62:63]\n    s_waitcnt lgkmcnt(0)\n    v_mov_b32 v26, s62\n    v_mov_b32 v27, s63\n"
        r += ("    s_lshl_b32 s66, s18, 4\n    s_add_u32 s66, s66, s98\n    v_mov_b32 v28, s66\n" if bypass else "    v_mov_b32 v28, s98\n")
        return r + "    s_mov_b64 exec, 1\n    buffer_store_dwordx2 v[26:27], v28, s[68:71], 0 offen offset:%d\n    s_mov_b64 exec, -1" % (8 * slot)
    def marked(lines, marks):
        o = []; n = 0
        for l in lines:
            if "v_mfma" in l:
                if cfg.stamp and n in marks: o.append(marks[n])
                n += 1
            o.append(l)
        return o
    L += marked(hl, {k: "    s_memtime s[%d:%d]" % (v, v + 1) for k, v in {0: 74, 48: 76, 112: 78, 176: 80, 240: 82, 304: 84}.items()})
    if cfg.stamp:
        a("    s_memtime s[86:87]\n    s_waitcnt lgkmcnt(0)\n    s_add_u32 s66, s98, 0x40000\n    v_mov_b32 v28, s66\n    s_mov_b64 exec, 1")
        for i in range(13):
            a("    v_mov_b32 v26, s%d\n    buffer_store_dword v26, v28, s[68:71], 0 offen offset:%d" % (72 + 2 * i if i < 12 else 3, 4 * i))
        a("    v_mov_b32 v28, s98\n    v_mov_b32 v26, s100\n    v_mov_b32 v27, s101\n    buffer_store_dwordx2 v[26:27], v28, s[68:71], 0 offen")
        a("    v_mov_b32 v26, s22\n    v_mov_b32 v27, s23\n    buffer_store_dwordx2 v[26:27], v28, s[68:71], 0 offen offset:64\n    s_mov_b64 exec, -1")
        a(itstamp(1)); a(itstamp(2))
    a("L_loop:")
    pm = {}
    def dump():
        a("    s_waitcnt lgkmcnt(0)\n    s_add_u32 s66, s98, 0x60000\n    v_mov_b32 v28, s66\n    s_mov_b64 exec, 1")
        for i in range(13): a("    v_mov_b32 v26, s%d\n    buffer_store_dword v26, v28, s[68:71], 0 offen offset:%d" % (72 + 2 * i, 4 * i))
        a("    s_mov_b64 exec, -1")
    if cfg.probe is not None: pm = {cfg.probe + k * cfg.pstep: "    %s s[%d:%d]" % ("s_memrealtime" if cfg.prt else "s_memtime", 72 + 2 * k, 73 + 2 * k) for k in range(13)}
    m1 = {NM: itstamp(3, True), NM - cfg.R + 672: itstamp(6)} if cfg.probe is None else pm
    L += marked(b1, m1)
    a("    s_cmp_eq_u32 s18, 1")
    a("    s_cbranch_scc0 L_more")
    a("L_tail:")
    L += tl
    if cfg.stamp:
        a("    s_waitcnt vmcnt(0)")
        stamp(a, 7); stamp(a, 9, True)
        if cfg.probe is not None and cfg.ppass == 2: dump()
    a("L_end:")
    a("    s_endpgm")
    a("L_more:")
    L += marked(b2, {k - (2 * NM - cfg.R): v for k, v in pm.items()})
    if cfg.stamp and cfg.probe is not None and cfg.ppass == 1: dump()
    if cfg.stamp: a(itstamp(4))
    if cfg.mute: a("    v_mov_b32 v16, 0x30000\n    v_mov_b32 v17, 0x30000\n    v_mov_b32 v18, 0x30000")
    a("    s_mov_b32 s18, 1\n    s_mov_b32 s19, 0\n    s_branch L_loop")
    lines = hl + b1 + b2 + tl
    slow_paths(a)
    fallback(a)
    a("L_code_end:")
    nw = sum(1 for l in lines if 's_waitcnt' in l); nn = sum(1 for l in lines if 's_nop' in l)
    sys.stderr.write("lines=%d waits=%d nops=%d\n" % (len(lines), nw, nn))
    return "\n".join(L) + "\n"

MAIN_DESC = """.amdhsa_kernel %s_kernel
  .amdhsa_next_free_vgpr 512
  .amdhsa_next_free_sgpr 102
  .amdhsa_accum_offset 256
  .amdhsa_group_segment_fixed_size 0
  .amdhsa_kernarg_size 48
  .amdhsa_user_sgpr_count 2
  .amdhsa_user_sgpr_kernarg_segment_ptr 1
  .amdhsa_system_sgpr_workgroup_id_x 1
.end_amdhsa_kernel
""" % NAME

def generate(cfg):
    s = HEADER
    s += "; @launch grid=(256,1,1) block=(256,1,1) lds=163840\n"
    s += '.amdgcn_target "amdgcn-amd-amdhsa--gfx950"\n.text\n'
    s += main_kernel(cfg)
    s += '.section .rodata,"a"\n.p2align 6\n' + MAIN_DESC
    return s

if __name__ == "__main__":
    ap = argparse.ArgumentParser()
    ap.add_argument("-o", default="/code/%s.s" % NAME)
    ap.add_argument("--stamp", action="store_true")
    ap.add_argument("--set", action="append", default=[])
    args = ap.parse_args()
    cfg = Cfg(); cfg.stamp = args.stamp
    for kv in args.set:
        k, v = kv.split("="); setattr(cfg, k, eval(v))
    open(args.o, "w").write(generate(cfg))
```

```python
import sys, struct, math, argparse
sys.path.insert(0, "gen"); sys.path.insert(0, "gen")
from sched2 import *

NAME = "standalone__swin_window_attn__vision"
DELTA = 25165824
XBYTES = 100663296
ROWB = 196608
WIMG = 147456
KAPPA = (192 ** -0.5) * math.log2(math.e)
NM = 768
P = 16
def f32hex(x): return "0x%08x" % struct.unpack("<I", struct.pack("<f", x))[0]

HEADER = """; Kernarg layout for this problem (48 bytes, ptrs only, base s[0:1]):
"""

vWB = [1, 2, 3]; vSTO = 11
vMX = [12, 13, 14, 15]; vSM = [20, 21, 22, 23]; vTMP = 16
def vS(kb, tb): return 32 + tb * 16 + kb * 4
def vP(tb, v): return 32 + tb * 8 + v * 4
def vACC(h, i): return 96 + h * 16 + i * 4
def vVB(cb, v): return 128 + cb * 8 + v * 4
def vYB(tb, u=1): return (208 if u & 1 else YB0) + tb * 4
YB0 = 208
def vH(m, tb): return (224, 128, 160)[m] + tb * 8
def aXF(par, tb, s): return par * 96 + (tb * 6 + s) * 4
RING = 15
def aWR(q): return 192 + (q % RING) * 4
sX = 8; sOUT = 12; sLD = 24; sKAP = 40
def sST(par): return 32 + par
sSTE = 52
sWIN = 16

class Cfg:
    ldflag = " nt"; stflag = " sc1"; wflag = ""; wlead = 26; stamp = False
    ldlat = 150; stgd = 40; R = 368; amap = 1; mute = 0; ppass = 1; zig = 2; w32 = 1; abl = None; prt = 0
    ldtA = (676, 732, 788, 844, 900, 956, 1012, 1068, 1124, 1180, 1236, 1292)
    stgA = (50, 100, 150, 570, 590, 610, 630, 650, 670, 690, 710, 730)
    ldtB = (742, 798, 854, 910, 966, 1022, 1078, 1134, 1190, 1246, 1302, 1358)
    stgB = (310, 335, 360, 720, 735, 750, 772, 786, 810, 835, 870, 900)
    sttA = ((48, 700, 11.7),); stmA = (0, 1, 2)
    sttB = ((8, 505, 7), (8, 568, 8), (16, 650, 5), (4, 754, 3), (12, 800, 25)); stmB = (0, 1, 2)
    stE = (); stE0 = 0
    hd_x0 = 150; hd_xstep = 22
    n0 = 24; nstep = 6; nlat = 80
    g3c = 1; fold = 1; frag = 0; chain = 1; wsp = 2; wdl = 6; probe = None; l2t = (); l2w = (); l2o = 2048; hop = 128; hopw = 2; pstep = 64; mode = 'nnns'; stt_0 = None; ldt_2 = None; stg_2 = None; xpf = (); xpflag = ""; ab = (); split = 1; pft = 96; pflead = 100; pf0 = 1
    fm = (10, 60); f1 = (30, 80, 130); pace = 3; polls = 400; pollflag = " nt"; psleep = 4; x0pre = 0; m0first = 0; quiet = 0; gate = 1

def stamp(a, idx, rt=False):
    a("    %s s[62:63]" % ("s_memrealtime" if rt else "s_memtime"))
    a("    s_waitcnt lgkmcnt(0)")
    a("    v_mov_b32 v26, s62\n    v_mov_b32 v27, s63\n    v_mov_b32 v28, s98")
    a("    s_mov_b64 exec, 1")
    a("    buffer_store_dwordx2 v[26:27], v28, s[68:71], 0 offen offset:%d" % (idx * 8))
    a("    s_mov_b64 exec, -1")

def mfma(d, a_kind, a, b_kind, b, first, tag=""):
    c = "0" if first else rtxt('v', d, 4)
    cr = [] if first else V(d, 4)
    return Op("v_mfma_f32_16x16x32_bf16 %s, %s, %s, %s" % (rtxt('v', d, 4), rtxt(a_kind, a, 4), rtxt(b_kind, b, 4), c),
              'mfma', reads=regs(a_kind, a, 4) + regs(b_kind, b, 4) + cr, writes=V(d, 4), creads=cr, tag=tag, passes=4)

def wread(q, k, **kw):
    off = k * 1024
    base = vWB[off // 65536]
    return Op("ds_read_b128 %s, v%d offset:%d" % (rtxt('a', aWR(q), 4), base, off % 65536), 'dsr',
              reads=V(base), writes=A(aWR(q), 4), tag="W%d" % k, **kw)

def cvt(dst, s0, s1, **kw):
    return Op("v_cvt_pk_bf16_f32 v%d, v%d, v%d" % (dst, s0, s1), 'valu', reads=V(s0) + V(s1), writes=V(dst), **kw)

XPA = [(tb, m) for tb in range(4) for m in range(3)]
XPB = XPA[:6] + [(tb, m) for m in range(3) for tb in (2, 3)]
XP = (XPA, XPB)
vLDE = [9, 10]; vSTW = 4; vSTR = [5, 6]
def xload(par, j, e, cfg, **kw):
    tb, m = XP[par][j]; d = aXF(par, tb, 2 * m + e)
    o = Op("buffer_load_dwordx4 %s, v%d, s[%d:%d], s%d offen offset:%d%s" %
           (rtxt('a', d, 4), vLDE[e], sX, sX + 3, sLD + 2 * tb, 128 * m, cfg.ldflag), 'vld',
           reads=V(vLDE[e]) + S(sX, 4) + S(sLD + 2 * tb), writes=A(d, 4), **kw)
    o.lat = cfg.ldlat * P
    return o
W32 = False
def staging(par, j, wide=False, **kw):
    tb, m = XP[par][j]; o = []
    vSTW, vSTR = ((16, [17, 18]), (4, [5, 6]))[par]
    keys = []
    for e in range(2):
        for h in range(2):
            d = aXF(par, tb, 2 * m + e) + 2 * h
            if W32 and not wide:
                for c in range(2):
                    keys.append('STG%d%d%d' % (e, h, c))
                    o.append(Op("ds_write_b32 v%d, a%d offset:%d" % (vSTW, d + c, 1024 * h + 512 * e + 4 * c), 'dsw1', reads=V(vSTW) + A(d + c), writes=[keys[-1]], **kw))
            else:
                keys += ['STG%d%d0' % (e, h), 'STG%d%d1' % (e, h)]
                o.append(Op("ds_write_b64 v%d, %s offset:%d" % (vSTW, rtxt('a', d, 2), 1024 * h + 512 * e), 'dsw2', reads=V(vSTW) + A(d, 2), writes=keys[-2:], **kw))
    for sp in range(2):
        d = aXF(par, tb, 2 * m + sp)
        o.append(Op("ds_read2_b64 %s, v%d offset0:0 offset1:128" % (rtxt('a', d, 4), vSTR[sp]), 'dsr',
                    reads=V(vSTR[sp]) + keys, writes=A(d, 4), **kw))
    return o

def vop(text, rd, wr, kind='valu'): return Op(text, kind, rd, wr)

def cross_reduce(o, r, opn, tmp, post):
    a_, b_, c_, d_ = r
    o.append(vop("v_permlane16_swap_b32 v%d, v%d" % (a_, b_), V(a_) + V(b_), V(a_) + V(b_), 'perm'))
    o.append(vop("v_permlane16_swap_b32 v%d, v%d" % (c_, d_), V(c_) + V(d_), V(c_) + V(d_), 'perm'))
    o.append(vop("%s v%d, v%d, v%d" % (opn, a_, a_, b_), V(a_) + V(b_), V(a_)))
    o.append(vop("%s v%d, v%d, v%d" % (opn, c_, c_, d_), V(c_) + V(d_), V(c_)))
    o.append(vop("v_permlane32_swap_b32 v%d, v%d" % (a_, c_), V(a_) + V(c_), V(a_) + V(c_), 'perm'))
    o.append(vop("%s v%d, v%d, v%d" % (opn, a_, a_, c_), V(a_) + V(c_), V(a_)))
    post(a_)
    o.append(vop("v_mov_b32 v%d, v%d" % (c_, a_), V(a_), V(c_)))
    o.append(vop("v_permlane32_swap_b32 v%d, v%d" % (a_, c_), V(a_) + V(c_), V(a_) + V(c_), 'perm'))
    o.append(vop("v_mov_b32 v%d, v%d" % (b_, a_), V(a_), V(b_)))
    o.append(vop("v_mov_b32 v%d, v%d" % (d_, c_), V(c_), V(d_)))
    o.append(vop("v_permlane16_swap_b32 v%d, v%d" % (a_, b_), V(a_) + V(b_), V(a_) + V(b_), 'perm'))
    o.append(vop("v_permlane16_swap_b32 v%d, v%d" % (c_, d_), V(c_) + V(d_), V(c_) + V(d_), 'perm'))

def cross_reduce2(o, r, opn, post):
    a_, b_ = r
    o.append(vop("v_permlane16_swap_b32 v%d, v%d" % (a_, b_), V(a_) + V(b_), V(a_) + V(b_), 'perm'))
    o.append(vop("%s v%d, v%d, v%d" % (opn, a_, a_, b_), V(a_) + V(b_), V(a_)))
    o.append(vop("v_mov_b32 v%d, v%d" % (b_, a_), V(a_), V(b_)))
    o.append(vop("v_permlane32_swap_b32 v%d, v%d" % (a_, b_), V(a_) + V(b_), V(a_) + V(b_), 'perm'))
    o.append(vop("%s v%d, v%d, v%d" % (opn, a_, a_, b_), V(a_) + V(b_), V(a_)))
    post(a_)
    o.append(vop("v_mov_b32 v%d, v%d" % (b_, a_), V(a_), V(b_)))
    o.append(vop("v_permlane16_swap_b32 v%d, v%d" % (a_, b_), V(a_) + V(b_), V(a_) + V(b_), 'perm'))

def softmax(tbs, fold=False):
    o = []
    def red(regs, opn, post):
        if len(tbs) == 4: cross_reduce(o, regs, opn, None, post)
        else: cross_reduce2(o, [regs[t] for t in tbs], opn, post)
    for tb in tbs:
        e = [vS(0, tb) + i for i in range(16)]; m = vMX[tb]
        o.append(vop("v_max3_f32 v%d, v%d, v%d, v%d" % (m, e[0], e[1], e[2]), V(e[0]) + V(e[1]) + V(e[2]), V(m)))
        for i in range(3, 15, 2):
            o.append(vop("v_max3_f32 v%d, v%d, v%d, v%d" % (m, m, e[i], e[i + 1]), V(m) + V(e[i]) + V(e[i + 1]), V(m)))
        o.append(vop("v_max_f32 v%d, v%d, v%d" % (m, m, e[15]), V(m) + V(e[15]), V(m)))
    red(vMX, "v_max_f32", (lambda z: None) if fold else (lambda z: o.append(vop("v_mul_f32 v%d, s%d, v%d" % (z, sKAP, z), V(z) + S(sKAP), V(z)))))
    for tb in tbs:
        e = [vS(0, tb) + i for i in range(16)]; m = vMX[tb]; l = vSM[tb]
        for i in range(16):
            if fold: o.append(vop("v_sub_f32 v%d, v%d, v%d" % (e[i], e[i], m), V(e[i]) + V(m), V(e[i])))
            else: o.append(vop("v_fma_f32 v%d, v%d, s%d, -v%d" % (e[i], e[i], sKAP, m), V(e[i]) + V(m) + S(sKAP), V(e[i])))
            o.append(vop("v_exp_f32 v%d, v%d" % (e[i], e[i]), V(e[i]), V(e[i]), 'trans'))
            if i == 1: o.append(vop("v_add_f32 v%d, v%d, v%d" % (l, e[0], e[1]), V(e[0]) + V(e[1]), V(l)))
            elif i > 1: o.append(vop("v_add_f32 v%d, v%d, v%d" % (l, l, e[i]), V(l) + V(e[i]), V(l)))
    red(vSM, "v_add_f32", lambda z: o.append(vop("v_rcp_f32 v%d, v%d" % (z, z), V(z), V(z), 'trans')))
    for tb in tbs:
        base = vS(0, tb); l = vSM[tb]
        for j in range(8):
            o.append(vop("v_mul_f32 v%d, v%d, v%d" % (base + 2 * j, base + 2 * j, l), V(base + 2 * j) + V(l), V(base + 2 * j)))
            o.append(vop("v_mul_f32 v%d, v%d, v%d" % (base + 2 * j + 1, base + 2 * j + 1, l), V(base + 2 * j + 1) + V(l), V(base + 2 * j + 1)))
            o.append(cvt(vP(tb, 0) + j, base + 2 * j, base + 2 * j + 1))
    return o

FLAG = WIMG + 4 * 2048
vFA = 29; vFL = 30; sFL = 41; vMK = [26, 27, 28]; sXC = 48; NPROD = 24; vNW = 24; vNB = 25
NTASK = 72
PUBB = (1, 2, 3, 4, 5)

def at(o, idx, slack=6):
    o.emi = max(0, idx); o.deadline = max(0, idx + slack) * P; return o

class Builder:
    def __init__(self, cfg, nwin, head, wuse=None):
        self.nwin = nwin; self.head = head; self.own = (0, 'c'); self.cnt = {}
        self.cfg = cfg; self.ops = []; self.nm = 0; self.pending = None
        self.wuse = wuse; self.wseq = []; self.wfirst = []; self.wlast = []; self.nw = 0
        self.ev = []; self.seen = set(); self.marks = {}; self.labels = set()
    def add(self, o, own=None):
        own = own or self.own
        c = self.cnt.get(own, 0); self.cnt[own] = c + 1
        o.grp = own + (c,); self.ops.append(o); return o
    def event(self, idx, fn): self.ev.append((idx, len(self.ev), fn)); self.ev.sort(key=lambda e: e[:2])
    def check(self, key, mask, idx, after):
        cfg = self.cfg
        rd = Op("ds_read_b32 v%d, v%d" % (vFL, vFA), 'dsr', V(vFA) + after, V(vFL), deadline=max(0, idx * P - 200)); rd.emi = max(0, idx - 12)
        rf = Op("v_readfirstlane_b32 s%d, v%d" % (sFL, vFL), 'valu', V(vFL), S(sFL), deadline=idx * P)
        if mask & (mask - 1) == 0:
            br = Op("s_bitcmp1_b32 s%d, %d\n    s_cbranch_scc0 L_slow%d\nL_ok%d:" % (sFL, mask.bit_length() - 1, key, key), 'salu', S(sFL), [('BAR', key)], deadline=idx * P + 16)
        else:
            br = Op("s_andn2_b32 s%d, %d, s%d\n    s_cbranch_scc1 L_slow%d\nL_ok%d:" % (sFL, mask, sFL, key, key), 'salu', S(sFL), [('BAR', key)] + S(sFL), deadline=idx * P + 16)
        br.cost = 8
        for o in (rd, rf, br): self.add(o, (0, 'H'))
    def addm(self, o):
        cfg = self.cfg
        while self.ev and self.ev[0][0] <= self.nm: self.ev.pop(0)[2]()
        if self.wuse is not None:
            while self.nw < len(self.wuse) and self.wuse[self.nw][2] <= self.nm:
                q = self.nw; k, first, emi = self.wuse[q]
                r = wread(q, k, deadline=min(first * P - 150, (emi + cfg.wdl) * P)); r.emi = max(0, emi)
                if self.head and first < NM:
                    key = min(k // 12, 6)
                    if key not in self.seen:
                        self.seen.add(key)
                        self.check(key, (1 << key) if key < 6 else 0x3c0, max(0, emi - 2),
                                   [('FS', j) for j in range(5) if key >= PUBB[j]] + ([('FS', 5)] if key == 6 else []))
                    r.reads.append(('BAR', key))
                if self.head and self.nm == 0 and q < 8: r.writes.append('W0G%d' % q); o.reads.append('W0G%d' % q)
                self.add(r, (first // NM, 'w')); self.nw += 1
        self.nm += 1; return self.add(o)
    def w_new(self, k):
        self.wseq.append(k); self.wfirst.append(self.nm); self.wlast.append(self.nm); return len(self.wseq) - 1
    def run_pending(self):
        if self.pending is not None:
            p = self.pending; self.pending = None; p()
    def g3(self, u, tbs):
        for tb in tbs:
            for ki, kb in enumerate([3, 2, 1, 0] if self.cfg.zig > 1 and tb & 1 else [0, 1, 2, 3]):
                us = [u - 1, u] if self.cfg.g3c else [u]
                if self.cfg.zig and ki & 1: us.reverse()
                for i, uu in enumerate(us):
                    self.addm(mfma(vS(kb, tb), 'a', aXF(self.par, kb, uu), 'v', vYB(tb, uu), first=(i == 0 and 0 in us), tag="G3 u%d" % uu))
        if u == 5:
            for o in softmax(tbs, self.cfg.fold): self.add(o)
    def g1(self, cb, tbs):
        hh = cb & 1
        if self.cfg.chain:
            qs = {}
            for i, tb in enumerate(tbs[::-1] if self.cfg.zig > 1 and cb & 1 else tbs):
                for z, s in enumerate(range(5, -1, -1) if self.cfg.zig and i & 1 else range(6)):
                    if s not in qs: qs[s] = self.w_new(6 * cb + s)
                    self.wlast[qs[s]] = self.nm
                    self.addm(mfma(vACC(hh, tb), 'a', aWR(qs[s]), 'a', aXF(self.par, tb, s), first=(z == 0), tag="G1 cb%d s%d" % (cb, s)))
                if i == 1: self.run_pending()
        else:
          for s in range(6):
            q = self.w_new(6 * cb + s)
            for tb in tbs:
                self.wlast[q] = self.nm
                self.addm(mfma(vACC(hh, tb), 'a', aWR(q), 'a', aXF(self.par, tb, s), first=(s == 0), tag="G1 cb%d s%d" % (cb, s)))
            if s == (2 if len(tbs) == 4 else 4): self.run_pending()
        for tb in tbs:
            for j in range(2):
                self.add(cvt(vYB(tb, cb // 2) + 2 * hh + j, vACC(hh, tb) + 2 * j, vACC(hh, tb) + 2 * j + 1))
        if hh == 1 and (not self.cfg.g3c or cb % 4 == 3): self.pending = (lambda u=cb // 2: self.g3(u, tbs))
    def g2(self, cb):
        st = cb & 1
        if self.cfg.chain:
            qs = {}
            for i, kb in enumerate([3, 2, 1, 0] if self.cfg.zig > 1 and cb & 1 else [0, 1, 2, 3]):
                for z, s in enumerate(range(5, -1, -1) if self.cfg.zig and i & 1 else range(6)):
                    if s not in qs: qs[s] = self.w_new(72 + 6 * cb + s)
                    self.wlast[qs[s]] = self.nm
                    self.addm(mfma(vACC(st, kb), 'a', aXF(self.par, kb, s), 'a', aWR(qs[s]), first=(z == 0), tag="G2 cb%d s%d" % (cb, s)))
                if i == 1: self.run_pending()
        else:
          for s in range(6):
            q = self.w_new(72 + 6 * cb + s)
            for kb in range(4):
                self.wlast[q] = self.nm
                self.addm(mfma(vACC(st, kb), 'a', aXF(self.par, kb, s), 'a', aWR(q), first=(s == 0), tag="G2 cb%d s%d" % (cb, s)))
            if s == 2: self.run_pending()
        for v in range(2):
            for j in range(4):
                src = vACC(st, 2 * v + j // 2) + 2 * (j % 2)
                self.add(cvt(vVB(cb, v) + j, src, src + 1))
    def g4(self, m, tbs, sets):
        cfg = self.cfg; n = self.n
        for tb, ob in zip(tbs, sets):
            for z, qi in [(z, q) for q in range(4) for z in range(2)]:
                    q = 3 - qi if cfg.zig > 1 and tb & 1 else qi
                    v = 1 - z if cfg.zig and qi & 1 else z
                    self.addm(mfma(ob + 4 * q, 'v', vP(tb, v), 'v', vVB(4 * m + q, v), first=(z == 0), tag="G4 m%d tb%d" % (m, tb)))
            for r in range(4):
                self.add(cvt(vH(m, tb) + 2 * r, ob + r, ob + 4 + r))
                self.add(cvt(vH(m, tb) + 2 * r + 1, ob + 8 + r, ob + 12 + r))
        stt = [t0 + i * dt for (c, t0, dt) in (cfg.sttB if n & 1 else cfg.sttA) for i in range(c)]
        assert len(stt) == 48
        stm = cfg.stmB if n & 1 else cfg.stmA
        ste = [t0 + i * dt for (c, t0, dt) in cfg.stE for i in range(c)]
        for tb in tbs:
            for r in range(4):
                d = vH(m, tb) + 2 * r
                mk = lambda row: Op("buffer_store_dwordx2 %s, v%d, s[%d:%d], s%d offen offset:%d%s" % (rtxt('v', d, 2), vSTO, sOUT, sOUT + 3, row, r * 384 + m * 128, cfg.stflag), 'vst1',
                                    reads=V(d, 2) + V(vSTO) + S(sOUT, 4) + S(row))
                k = 16 * m + 4 * tb + r
                early = n & 1 and cfg.stE0 <= k < cfg.stE0 + len(ste)
                if early: self.add(at(mk(sSTE + tb), n * NM + int(ste[k - cfg.stE0])), (n, 'e'))
                self.add(at(mk(sST(n & 1) + 2 * tb), n * NM + int(stt[16 * stm.index(m) + 4 * tb + r])), (n, 'L') if early else None)
    def rows(self, base, k, own):
        for rho in range(0, 8, 2):
            self.add(Op("s_add_u32 s%d, s%d, %d" % (base + rho, sWIN, k * WSTEP(self.cfg) + rho * ROWB), 'salu', S(sWIN), S(base + rho)), own)
    def plan_x(self, n):
        cfg = self.cfg; par = n & 1
        for j in range(12):
            tl = (n - 2) * NM + (cfg.ldtA, cfg.ldtB)[par][j]
            if n == 1: tl = max(tl, cfg.hd_x0 + j * cfg.hd_xstep) if tl >= cfg.R else cfg.hd_x0 + j * cfg.hd_xstep
            ts = (n - 1) * NM + (cfg.stgA, cfg.stgB)[par][j]
            def ld(j=j, tl=tl):
                if j == 0: self.rows(sLD, 1 if n == 1 else 2 + par, (n, 'r'))
                for e in range(2): self.add(at(xload(par, j, e, cfg), tl), (n, 'l'))
            def sg(j=j, ts=ts):
                for x in staging(par, j): self.add(at(x, ts, cfg.stgd), (n, 's'))
            if tl < self.nwin * NM: self.event(tl, ld)
            if ts < self.nwin * NM: self.event(ts, sg)
    def plan_head(self):
        cfg = self.cfg
        pubs = [(cfg.fm[0], 0, 12, vMK[0]), (cfg.fm[1], 0, 0, vMK[1]), (cfg.f1[0], 1, 24, vMK[0]), (cfg.f1[1], 1, 12, vMK[1]), (cfg.f1[2], 1, 0, vMK[2])]
        self.pubs = pubs
        for k, (tau, w, c, v) in enumerate(pubs):
            o = Op("s_cmp_eq_u32 s49, %d\n    s_cbranch_scc0 L_pub%d\n    s_waitcnt vmcnt(@%d+%d@)\n    ds_or_b32 v%d, v%d\nL_pub%d:" % (w, k, k, c, vFA, v, k), 'salu',
                   V(vFA) + V(v), [('FS', k)])
            o.cost = 8; self.add(at(o, tau, 4), (0, 'H'))
        def nload():
            keep = self.own; self.own = (0, 'H')
            NR = lambda k: 128 + 4 * k if k < 16 else 224 + 4 * (k - 16)
            for k in range(18):
                t = cfg.n0 + k * cfg.nstep
                if k % 4 == 0: self.add(at(Op("s_add_u32 s61, s60, %d" % (k * 1024), 'salu', S(60), S(61)), t - 2))
                o = Op("buffer_load_dwordx4 %s, v1, s[52:55], s61 offen offset:%d%s" % (rtxt('v', NR(k), 4), (k % 4) * 1024, cfg.wflag), 'vld',
                       V(1) + S(52, 4) + S(61) + [('BAR', 0)], V(NR(k), 4))
                o.lat = cfg.nlat * P; self.add(at(o, t))
            for k in range(18):
                for h in range(2):
                    self.add(at(Op("ds_write_b64 v%d, %s offset:%d" % (vNW, rtxt('v', NR(k) + 2 * h, 2), k * 1024 + 8 * h), 'dsw2',
                                   V(vNW) + V(NR(k) + 2 * h, 2), ['NW%d%d' % (k, h)]), cfg.n0 + k * cfg.nstep + cfg.nlat, 40))
            self.add(at(Op("ds_or_b32 v%d, v%d" % (vFA, vNB), 'dsw2', V(vFA) + V(vNB) + ['NW%d%d' % (k, h) for k in range(18) for h in range(2)], [('FS', 5)]),
                        cfg.n0 + 17 * cfg.nstep + cfg.nlat, 50))
            self.own = keep
        self.event(1, nload)
    def build(self):
        cfg = self.cfg
        if self.head: self.plan_head()
        for n in range(1, self.nwin + 2): self.plan_x(n)
        ALL = [0, 1, 2, 3]; SETS = [64, 80, 96, 112]
        for n in range(self.nwin):
            self.n = n; self.par = n & 1; self.own = (n, 'c')
            if n & 1 == 0:
                self.add(Op("s_add_u32 s%d, s%d, %d" % (sWIN, sWIN, 2 * WSTEP(cfg)), 'salu', S(sWIN), S(sWIN)))
                self.event(n * NM + 660, lambda n=n: self.add(at(Op("s_mov_b32 s%d, s19" % (sX + 2), 'salu', S(19), S(sX + 2)), n * NM + 660), (n, 'x')))
            self.event(n * NM + (400 if n & 1 else 600), lambda n=n: self.rows(sST(n & 1), n & 1, (n, 't')))
            if n & 1:
                def erows(n=n):
                    for tb in range(4):
                        self.add(Op("s_add_u32 s%d, s%d, s19" % (sSTE + tb, sST(1) + 2 * tb), 'salu', S(sST(1) + 2 * tb) + S(19), S(sSTE + tb)), (n, 't'))
                if cfg.stE: self.event(n * NM + 410, erows)
                for cb in range(12): self.g1(cb, [0, 1])
                for cb in range(12): self.g1(cb, [2, 3])
                for cb in range(4): self.g2(cb)
                self.g4(0, [0, 1], [192, 208])
                for cb in (4, 5): self.g2(cb)
                self.g4(0, [2, 3], [64, 80])
                for cb in (6, 7): self.g2(cb)
                self.g4(1, ALL, [64, 80, 192, 208])
                for cb in range(8, 12): self.g2(cb)
                self.g4(2, ALL, SETS)
            else:
                for cb in range(12): self.g1(cb, ALL)
                for cb in range(12): self.g2(cb)
                for m in range(3): self.g4(m, ALL, SETS)
            assert self.nm == (n + 1) * NM
        assert not self.ev, self.ev
        return self.ops

def WSTEP(cfg): return DELTA if cfg.amap == 0 else 2 * 1572864
def build_all(cfg, nwin, head):
    global YB0, W32
    W32 = cfg.w32
    YB0 = 192 if cfg.g3c else 208
    dry = Builder(cfg, nwin + 1, False); dry.build()
    use = []
    for q, (k, first) in enumerate(zip(dry.wseq, dry.wfirst)):
        s_ = k % 6; emi = first - s_ - cfg.wlead + cfg.wsp * s_
        if q >= RING: emi = max(emi, dry.wlast[q - RING] + 1)
        if use: emi = max(emi, use[-1][2])
        assert q < RING or dry.wlast[q - RING] < emi <= first - 8, (q, dry.wlast[q - RING], emi, first)
        use.append((k, first, emi))
    b = Builder(cfg, nwin, head, use)
    return b.build(), b

def cut_at(ops, n):
    c = 0
    for i, o in enumerate(ops):
        if o.kind == 'mfma':
            if c == n: return i
            c += 1
    return len(ops)

def make_stream(cfg):
    R = cfg.R
    ops, B = build_all(cfg, 8, False)
    order, stats = schedule(ops, **SCHED)
    c0, c1, c2 = (cut_at(order, k * NM + R) for k in (2, 4, 6))
    assert [o.text for o in order[c0:c1]] == [o.text for o in order[c1:c2]], "schedule is not periodic"
    body = order[c1:c2]; t0 = body[0].t
    period = order[c2].t - t0
    before = set((o.grp[0] - 4,) + o.grp[1:] for o in order[:c1] if o.grp[0] >= 4 and not (o.grp[0] == 4 and o.grp[1] in 'lrs'))
    ex = cut_at(body, 2 * NM - R)
    tail = [o for o in order[c1 + ex:] if o.grp[0] == 5 and o.grp[1] != 'L']
    assert not any(o.grp[0] == 5 and o.grp[1] == 'L' for o in body[:ex]) and not any(o.grp[1] == 'e' for o in body[ex:])
    assert all(o.grp[0] >= 5 for o in order[c1 + ex:]) and sum(o.kind == 'vst1' for o in tail) + sum(o.grp[0] == 5 and o.kind == 'vst1' for o in body[:ex]) == 48 and all(o.kind in ('valu', 'vst1') for o in tail), [o.text for o in tail if o.kind not in ('valu', 'vst1')]
    hops, HB = build_all(cfg, 2, True)
    hops = [o for o in hops if o.grp[1] == 'H' or o.grp in before]
    assert len([o for o in hops if o.grp[1] != 'H']) == len(before), (len(hops), len(before))
    horder, hstats = schedule(hops, **SCHED)
    sys.stderr.write("head %s, period %d, tail %d ops\n" % ({k: v for k, v in hstats.items() if k != 'late'}, period, len(tail)))
    for o in body: o.t -= t0
    def clone(o):
        c = Op(o.text, o.kind, o.reads, o.writes, tag=o.tag, creads=o.creads, passes=o.passes); c.grp = o.grp; return c
    tail = [clone(o) for o in tail]
    wr = set(r for o in tail for r in o.writes)
    tail.sort(key=lambda o: 1 if o.kind == 'valu' else (2 if wr & set(o.reads) else 0))
    parts = {1: body[:ex], 2: body[ex:]}
    def run(reqs, collect):
        st = State(); hl = finalize(horder, st, exact=True)
        out = {}; tb = hstats['end']
        for key in (1, 2, 1):
            c = [] if collect is not None else None
            ln = finalize(parts[key], st, tbase=tb, reqs=(reqs.get(key) if reqs else None), collect=c, exact=True)
            if collect is not None: collect.setdefault(key, []).append(c)
            out.setdefault(key, []).append(ln)
            if key == 2: tb += period
        return st, hl, out
    reqs = None
    for it in range(4):
        col = {}; run(reqs, col)
        reqs = {k: (merge_reqs(v[0], v[1]) if len(v) > 1 else v[0]) for k, v in col.items()}
    st, hl, out = run(reqs, None)
    assert out[1][0] == out[1][1], "waits are not stable"
    st.time = 10 ** 9
    tl = finalize(tail, st)
    return hl, out[1][0], out[2][0], tl

def raw_setup(a):
    a("""    s_cmp_ge_u32 s60, 36
    s_cselect_b32 s65, 36, 0
    s_cselect_b32 s97, 768, 0
    s_sub_u32 s65, s60, s65           ; t
    s_mul_i32 s66, s65, 43
    s_lshr_b32 s66, s66, 8            ; u = t / 6
    s_mul_i32 s67, s66, 6
    s_sub_u32 s67, s65, s67           ; s
    s_max_u32 s64, s49, 1
    s_mul_i32 s64, s64, 12288
    s_mul_i32 s61, s66, 36864
    s_add_u32 s61, s61, 384
    s_mul_i32 s62, s67, 36864
    s_add_u32 s62, s62, s97
    s_bitcmp1_b32 s63, 1
    s_cselect_b32 s61, s62, s61
    s_cselect_b32 s64, 0, s64
    s_cselect_b32 s97, 0, s97
    s_movk_i32 s62, 128
    s_movk_i32 s65, 9216
    s_mov_b32 s96, 32
    v_lshrrev_b32 v16, 3, v0
    v_and_b32 v17, 7, v0
    v_bfe_u32 v18, v0, 4, 1
    v_xor_b32 v17, v17, v18
    v_lshlrev_b32 v17, 4, v17
    v_mul_u32_u24 v16, 1152, v16
    s_cmp_eq_u32 s97, 0
    s_mov_b32 s18, 221184
    s_cbranch_scc1 L_raw_rows
    s_mov_b32 s18, 73728
    s_lshl_b32 s61, s66, 6
    s_movk_i32 s62, 6144
    s_movk_i32 s65, 18432
    s_mov_b32 s96, 0
    v_lshrrev_b32 v16, 2, v0
    v_mul_u32_u24 v16, 384, v16
    v_and_b32 v17, 3, v0
    v_lshlrev_b32 v17, 4, v17
L_raw_rows:""")
def raw_issue(a):
    a("""    s_cmp_eq_u32 s97, 0
    s_cselect_b32 s16, s6, s20
    s_cselect_b32 s17, s7, s21
    s_mov_b32 s19, 0x00020000
    s_mov_b32 m0, s64
    s_mov_b32 s97, 4
L_raw_lp:
    v_add_u32 v18, v16, v17
    s_add_u32 s42, s61, s62
    buffer_load_dwordx4 v18, s[16:19], s61 offen lds
    s_add_u32 m0, m0, 1024
    s_add_u32 s41, s42, s62
    buffer_load_dwordx4 v18, s[16:19], s42 offen lds
    s_add_u32 m0, m0, 1024
    s_add_u32 s61, s61, s65
    buffer_load_dwordx4 v18, s[16:19], s41 offen lds
    s_add_u32 m0, m0, 1024
    s_and_b32 s42, s97, 1
    s_mul_i32 s42, s42, s96
    s_lshl_b32 s42, s42, 1
    s_add_u32 s42, s42, s96
    v_xor_b32 v17, s42, v17
    s_sub_u32 s97, s97, 1
    s_cmp_lg_u32 s97, 0
    s_cbranch_scc1 L_raw_lp""")

def produce(a, cfg, waitA):
    a("""    s_mul_i32 s61, s66, 12
    s_add_u32 s61, s61, s67
    s_lshl_b32 s61, s61, 10           ; fragment (2u)*6 + s
    s_add_u32 s62, s61, 6144
    v_mov_b32 v27, v1
    v_bfe_u32 v22, v0, 2, 2           ; i >> 2
    v_and_b32 v23, 3, v0              ; i & 3
    v_lshrrev_b32 v26, 4, v0          ; g
    s_cmp_ge_u32 s60, 36
    s_cbranch_scc0 L_prod_A
    v_mul_u32_u24 v27, 6144, v23
    v_lshlrev_b32 v24, 8, v26
    v_lshlrev_b32 v25, 4, v22
    v_add3_u32 v27, v27, v24, v25
    s_lshr_b32 s61, s66, 1
    s_mul_i32 s61, s61, 24576
    s_and_b32 s62, s66, 1
    s_lshl_b32 s62, s62, 7
    s_add_u32 s61, s61, s62
    s_lshl_b32 s62, s67, 10
    s_add_u32 s61, s61, s62
    s_add_u32 s61, s61, 73728
    s_add_u32 s62, s61, 64
L_prod_A:
    v_mul_u32_u24 v24, 3072, v22
    v_lshl_add_u32 v24, v23, 7, v24
    v_bfe_u32 v25, v0, 1, 1
    v_lshl_add_u32 v25, v22, 1, v25   ; swizzle
    v_xor_b32 v25, v25, v26
    v_lshl_add_u32 v24, v25, 4, v24
    v_xor_b32 v25, 64, v24
    v_lshl_add_u32 v26, v26, 3, v22
    v_lshlrev_b32 v26, 6, v26
    v_lshl_add_u32 v26, v23, 3, v26
    v_add_u32 v26, s64, v26
    s_waitcnt vmcnt(0)""")
    waitA()
    if cfg.stamp: a("    s_memtime s[72:73]")
    def frags(base):
        for km in range(6):
            for t in range(2):
                d = base + 24 * t + 4 * km
                a("    ds_read_b128 v[%d:%d], v%d offset:%d" % (d, d + 3, 24 + (km & 1), (km >> 1) * 1024 + t * 512))
    frags(32)
    a("""    s_cmp_ge_u32 s60, 36
    s_cbranch_scc1 L_prod_N2
    v_add_u32 v24, s64, v24
    v_add_u32 v25, s64, v25""")
    frags(80)
    a("    s_branch L_prod_mm\nL_prod_N2:")
    for km in range(6):
        for h in range(2):
            for q in range(2):
                d = 80 + 24 * h + 4 * km + 2 * q
                a("    ds_read_b64_tr_b16 v[%d:%d], v26 offset:%d" % (d, d + 1, (32 * km + 4 * q) * 64 + 32 * h))
    a("""L_prod_mm:
    s_cmp_ge_u32 s60, 36
    s_cselect_b32 s65, 1.0, s%d       ; scale * log2(e) goes into M
    s_waitcnt lgkmcnt(0)""" % sKAP)
    for h in range(2):
        for km in range(6):
            for t in range(2):
                d = 128 + 8 * h + 4 * t
                c = "0" if km == 0 else "v[%d:%d]" % (d, d + 3)
                a("    v_mfma_f32_16x16x32_bf16 v[%d:%d], v[%d:%d], v[%d:%d], %s" % (d, d + 3, 32 + 24 * t + 4 * km, 35 + 24 * t + 4 * km, 80 + 24 * h + 4 * km, 83 + 24 * h + 4 * km, c))
    for h in range(2):
        if h == 1: a("    s_nop 7")
        if cfg.fold:
            for j in range(8): a("    v_mul_f32 v%d, s65, v%d" % (128 + 8 * h + j, 128 + 8 * h + j))
        for j in range(4):
            a("    v_cvt_pk_bf16_f32 v%d, v%d, v%d" % (144 + 4 * h + j, 128 + 8 * h + 2 * j, 129 + 8 * h + 2 * j))
        a("    buffer_store_dwordx4 v[%d:%d], v27, s[52:55], s%d offen" % (144 + 4 * h, 147 + 4 * h, 61 + h))

GUARD = "    s_sub_u32 s43, s43, 1\n    s_cbranch_scc1 L_end"
def prologue_roles(a, cfg):
    def setbit(v): a("    ds_or_b32 v%d, v%d" % (vFA, v))
    def setimm(bit):
        a("    v_mov_b32 v%d, %d" % (vFL, 1 << bit)); setbit(vFL)
    def waitmask(lab, sreg):
        a(lab + ":")
        a(GUARD)
        a("    ds_read_b32 v%d, v%d" % (vFL, vFA))
        a("    s_waitcnt lgkmcnt(0)")
        a("    v_readfirstlane_b32 s%d, v%d" % (sFL, vFL))
        a("    s_nop 1")
        a("    s_and_b32 s42, s%d, %s" % (sFL, sreg))
        a("    s_cmp_eq_u32 s42, %s" % sreg)
        a("    s_cbranch_scc0 %s" % lab)
    def wdma(n, first=0):
        for q in range(3 * first, 3 * (first + n)):
            a("    s_add_u32 s61, s60, %d" % (q * 4096))
            a("    s_mov_b32 m0, s61")
            a("    s_nop 0")
            for j in range(4):
                a("    buffer_load_dwordx4 v1, s[52:55], s61 offen offset:%d%s lds" % (j * 1024, cfg.wflag))
    xl = [xload(0, j, e, cfg).text for j in range(12) for e in range(2)]
    def land(nblk, younger0=0):
        younger = younger0
        a("    v_mov_b32 v16, v4\n    v_mov_b32 v17, v5\n    v_mov_b32 v18, v6")
        for k in range(24):
            if k == cfg.pace or k % 2 == 1: a("    s_waitcnt vmcnt(%d)" % (23 - k + younger))
            if k == cfg.pace: setbit(31)
            if k % 2 == 1:
                for o in staging(0, k // 2, True): a("    " + o.text)
            if k % 4 == 3 and k // 4 < nblk: wdma(1, k // 4); younger += 12
    def arrive(lab):
        if cfg.stamp: a("    s_memtime s[92:93]")
        a("""    v_mov_b32 v32, 1
    s_lshr_b32 s60, s2, 3
    s_add_u32 s60, s60, s%d
    v_mov_b32 v33, s60
    s_mov_b64 exec, 1
    ds_add_rtn_u32 v34, v%d, v32 offset:4
    s_waitcnt lgkmcnt(0)
    v_readfirstlane_b32 s61, v34
    s_nop 1
    s_cmp_eq_u32 s61, 2
    s_cbranch_scc0 %s
    buffer_store_byte v32, v33, s[56:59], 0 offen
    v_mov_b32 v32, 0x400000
    ds_or_b32 v%d, v32
%s:
    s_mov_b64 exec, -1""" % (sXC, vFA, lab, vFA, lab))
    a("    s_lshl_b32 s42, 4096, s49\n    v_mov_b32 v31, s42")
    a("    s_cmp_eq_u32 s49, 0")
    a("    s_cbranch_scc1 L_w0")
    a("    s_cmp_lt_u32 s2, %d" % (NPROD * 8))
    a("    s_cbranch_scc0 L_noprod")
    a("L_prod:")
    def waitA():
        a("    s_bitcmp1_b32 s63, 0\n    s_cbranch_scc1 L_gotA")
        waitmask("L_wA", "0x100000")
        a("L_gotA:")
    produce(a, cfg, waitA)
    a("    s_bitcmp1_b32 s63, 0\n    s_cbranch_scc1 L_fb_next")
    a("    s_cmp_eq_u32 s49, 1")
    a("    s_cbranch_scc0 L_p23")
    if cfg.stamp: a("    s_memtime s[94:95]")
    for l in xl: a("    " + l)
    a("    s_waitcnt vmcnt(24)")
    arrive("L_nl1")
    land(0)
    a("    s_branch L_w1go")
    a("L_p23:")
    a("    s_waitcnt vmcnt(0)")
    arrive("L_nl2")
    a("L_noprod:")
    a("    s_lshl_b32 s60, 2048, s49")
    if cfg.gate:
        a("    s_cmp_lt_u32 s2, %d\n    s_cselect_b32 s61, 0x400000, 0    ; this workgroup's flag byte is on its way\n    s_or_b32 s60, s60, s61" % (NPROD * 8))
    if cfg.quiet:
        a("    s_cmp_ge_u32 s49, %d\n    s_cselect_b32 s61, 0x200000, 0\n    s_or_b32 s60, s60, s61" % cfg.quiet)
    waitmask("L_wpace", "s60")
    if cfg.stamp: a("    s_memtime s[94:95]")
    for l in xl: a("    " + l)
    land(0)
    a("L_w1go:")
    if cfg.stamp: a("    s_memtime s[90:91]")
    a("    s_cmp_eq_u32 s49, 1")
    a("    s_cbranch_scc0 L_enter")
    waitmask("L_wgo", "0x200000")
    if cfg.stamp: a("    s_memtime s[88:89]")
    a("    s_mov_b32 s60, 36864")
    wdma(3)
    a("    v_mov_b32 v%d, 8\n    v_mov_b32 v%d, 16\n    v_mov_b32 v%d, 32" % tuple(vMK))
    a("    s_branch L_enter")
    a("L_w0:")
    if cfg.stamp: a("    s_memtime s[94:95]")
    a("    s_waitcnt vmcnt(24)"); setimm(20)
    land(0)
    if cfg.stamp: a("    s_memtime s[90:91]")
    a("""L_poll0:
    s_mov_b32 s61, 0
    v_min_u32 v33, 5, v0
    v_lshlrev_b32 v33, 2, v33
    s_mov_b32 s62, 0x01010101
    v_mov_b32 v34, 0
L_poll:
    buffer_load_dword v34, v33, s[56:59], s%d offen%s      ; samples return in order; each flag byte only ever goes 0 -> 1
    s_add_u32 s61, s61, 1
    s_sleep %d
    v_cmp_ne_u32 vcc, s62, v34
    s_nop 4
    s_cbranch_vccz L_go
    s_cmp_lt_u32 s61, %d
    s_cbranch_scc1 L_poll
    s_waitcnt vmcnt(0)
    s_branch L_fb
L_go:""" % (sXC, cfg.pollflag, cfg.psleep, cfg.polls))
    if cfg.stamp: a("    s_memtime s[88:89]")
    a("    s_mov_b32 s60, 0")
    wdma(1)
    setimm(21)
    if cfg.m0first: a("    s_waitcnt vmcnt(0)"); setimm(0)
    wdma(2, 1)
    a("    v_mov_b32 v%d, 2\n    v_mov_b32 v%d, 4" % (vMK[0], vMK[1]))
    if not cfg.m0first: a("    s_waitcnt vmcnt(24)"); setimm(0)
    a("L_enter:")
    a("    v_mov_b32 v16, v4\n    v_mov_b32 v17, v5\n    v_mov_b32 v18, v6")
    a("    s_mul_i32 s60, s49, 18432\n    s_add_u32 s60, s60, 73728\n    v_add_u32 v%d, s60, v1\n    s_lshl_b32 s61, 64, s49\n    v_mov_b32 v%d, s61" % (vNW, vNB))
    a("    s_waitcnt lgkmcnt(0)")

def fallback(a):
    a("""L_fb:
    s_mov_b32 s60, 0
    s_cmp_lt_u32 s2, %d               ; the sibling waves must be done with the LDS scratch
    s_cbranch_scc0 L_fb_task
L_fbw:
%s
    ds_read_b32 v34, v%d offset:4
    s_waitcnt lgkmcnt(0)
    v_readfirstlane_b32 s61, v34
    s_nop 1
    s_cmp_eq_u32 s61, 3
    s_cbranch_scc0 L_fbw
L_fb_task:
    s_mov_b32 s63, 3
    s_branch L_raw
L_fb_raw:
    s_bitcmp1_b32 s63, 1
    s_mov_b32 s63, 1
    s_cbranch_scc1 L_raw
    s_branch L_prod
L_fb_next:
    s_waitcnt vmcnt(0)
    s_add_u32 s60, s60, 1
    s_cmp_lt_u32 s60, %d
    s_cbranch_scc1 L_fb_task
    s_branch L_go""" % (NPROD * 8, GUARD, vFA, NTASK))

def slow_paths(a):
    for key in range(7):
        a("L_slow%d:" % key)
        a(GUARD)
        a("    ds_read_b32 v%d, v%d" % (vFL, vFA))
        a("    s_waitcnt lgkmcnt(0)")
        a("    v_readfirstlane_b32 s%d, v%d" % (sFL, vFL))
        a("    s_nop 1")
        a("    s_andn2_b32 s%d, %d, s%d" % (sFL, (1 << key) if key < 6 else 0x3c0, sFL))
        a("    s_cbranch_scc1 L_slow%d" % key)
        a("    s_branch L_ok%d" % key)

SCHED = dict(mfma_period=P, dsw_gap=56, vst1_gap=24, short=True)

def main_kernel(cfg):
    L = []
    a = L.append
    K = NAME + "_kernel"
    a(".globl %s\n.p2align 8\n.type %s,@function\n%s:" % (K, K, K))
    a("""    s_cmp_ge_u32 s2, 256
    s_cbranch_scc1 L_end""")
    if cfg.stamp: a("    s_memtime s[100:101]\n    s_memrealtime s[70:71]")
    a("""    s_load_dwordx4 s[4:7], s[0:1], 0        ; x, wqkv
    s_load_dwordx4 s[20:23], s[0:1], 16
    s_load_dwordx4 s[56:59], s[0:1], 32
    v_lshrrev_b32 v16, 6, v0
    v_and_b32 v0, 63, v0
    s_getpc_b64 s[44:45]
L_pc_ref:
    v_readfirstlane_b32 s49, v16            ; wave
    s_mov_b32 s46, L_code_end-L_pc_ref
    s_mov_b32 s47, 0x00020000
    v_lshlrev_b32 v7, 6, v0
    s_lshr_b32 s60, s2, 3
""")
    if cfg.pf0 == 0:
        a("    s_and_b32 s42, s60, 3\n    s_lshl_b32 s42, s42, 2\n    s_add_u32 s42, s42, s49\n    s_lshl_b32 s42, s42, 12\n    buffer_load_dword v8, v7, s[44:47], s42 offen")
    else:
        a("    s_lshl_b32 s42, s60, 2\n    s_add_u32 s42, s42, s49\n    s_lshl_b32 s42, s42, 7\n    v_lshrrev_b32 v8, 1, v0\n    v_and_b32 v7, 1, v0\n    v_lshlrev_b32 v7, 6, v7\n    v_lshl_add_u32 v8, v8, 14, v7\n    buffer_load_dword v8, v8, s[44:47], s42 offen")
    a("""    s_cmp_lt_u32 s60, %d
    s_cbranch_scc0 L_setup
    s_cmp_ge_u32 s60, 12
    s_cselect_b32 s61, 12, 0
    s_cselect_b32 s62, 36, 0
    s_sub_u32 s61, s60, s61                 ; r
    s_and_b32 s64, s61, 1
    s_mul_i32 s64, s64, 3
    s_max_u32 s65, s49, 1
    s_add_u32 s64, s64, s65
    s_sub_u32 s64, s64, 1                   ; u
    s_mul_i32 s64, s64, 6
    s_lshr_b32 s61, s61, 1                  ; s
    s_add_u32 s60, s64, s61
    s_add_u32 s60, s60, s62                 ; task
    s_cmp_eq_u32 s49, 0
    s_cselect_b32 s63, 2, 0
L_raw:""" % NPROD)
    raw_setup(a)
    if cfg.stamp: a("    s_memtime s[72:73]")
    a("    s_waitcnt lgkmcnt(0)")
    if cfg.stamp: a("    s_memtime s[92:93]")
    raw_issue(a)
    a("    s_bitcmp1_b32 s63, 0\n    s_cbranch_scc1 L_fb_raw")
    if cfg.stamp: a("    s_memtime s[98:99]")
    a("""L_setup:
    s_mov_b32 s43, 0x400000
    v_lshlrev_b32 v1, 4, v0                 ; lane*16
    v_add_u32 v2, 0x10000, v1
    v_add_u32 v3, 0x20000, v1
    v_lshrrev_b32 v16, 3, v0
    v_and_b32 v17, 7, v0
    v_lshrrev_b32 v18, 4, v0
    v_xor_b32 v17, v17, v18
    v_lshlrev_b32 v17, 4, v17
    v_mul_u32_u24 v16, 384, v16
    v_add_u32 v9, v16, v17
    v_xor_b32 v10, 64, v9
    v_add_u32 v10, 196608, v10
    s_lshl_b32 s52, s49, 11
    s_add_u32 s52, s52, 147456
    v_lshlrev_b32 v16, 3, v0
    v_add_u32 v4, s52, v16
    v_and_b32 v16, 15, v0                   ; i
    v_lshrrev_b32 v17, 4, v0                ; g
    v_lshrrev_b32 v18, 1, v16
    v_xor_b32 v18, v18, v17
    v_lshlrev_b32 v18, 3, v18
    v_lshl_add_u32 v18, v16, 6, v18
    v_add_u32 v5, s52, v18
    v_xor_b32 v6, 32, v5
    v_lshrrev_b32 v16, 5, v0                ; g>>1
    v_mul_u32_u24 v16, 196608, v16
    v_lshrrev_b32 v17, 4, v0
    v_and_b32 v17, 1, v17
    v_mul_u32_u24 v17, 1536, v17
    v_and_b32 v18, 15, v0
    v_lshlrev_b32 v18, 3, v18
    v_add3_u32 v11, v16, v17, v18
    s_nop 0""")
    if cfg.amap == 0:
        a("    s_lshr_b32 s53, s2, 4\n    s_and_b32 s54, s2, 15")
    else:
        a("    s_and_b32 s53, s2, 7\n    s_lshl_b32 s53, s53, 3\n    s_lshr_b32 s54, s2, 7\n    s_add_u32 s53, s53, s54\n    s_lshr_b32 s54, s2, 3\n    s_and_b32 s54, s54, 15")
    a("""    s_mul_i32 s53, s53, 1572864
    s_lshl_b32 s54, s54, 2
    s_add_u32 s54, s54, s49
    s_mul_i32 s54, s54, 3072
    s_add_u32 s53, s53, s54""")
    for rho in range(0, 8, 2):
        a("    s_add_u32 s%d, s53, %d" % (sLD + rho, rho * ROWB))
    a("    v_mov_b32 v%d, %d\n    v_mov_b32 v30, 0\n    v_mov_b32 v31, 0\n    ds_write_b64 v%d, v[30:31]" % (vFA, FLAG, vFA))
    a("    s_getreg_b32 s%d, hwreg(HW_REG_XCC_ID, 0, 3)" % sXC)
    a("    s_waitcnt lgkmcnt(0)")
    a("    s_mov_b32 s8, s4\n    s_mov_b32 s9, s5\n    s_mov_b32 s10, %d\n    s_mov_b32 s11, 0x00020000" % XBYTES)
    if not cfg.x0pre: a("    s_barrier")
    a("    s_cmp_eq_u32 s49, 0\n    s_cbranch_scc0 L_nox0")
    for j in range(12):
        for e in range(2): a("    " + xload(0, j, e, cfg).text)
    a("L_nox0:")
    if cfg.x0pre: a("    s_barrier")
    a("    s_mov_b32 s3, s53") if not cfg.stamp else a("    s_mov_b32 s99, s53")
    a("    s_mov_b32 s12, s22\n    s_mov_b32 s13, s23\n    s_mov_b32 s14, %d\n    s_mov_b32 s15, 0x00020000" % XBYTES)
    a("    s_mov_b32 s%d, %s" % (sKAP, f32hex(KAPPA)))
    a("    s_mov_b32 s50, s58\n    s_mov_b32 s51, s59")
    a("    s_mov_b32 s58, 256\n    s_mov_b32 s59, 0x00020000")
    if cfg.stamp:
        a("    s_mov_b64 s[22:23], s[70:71]\n    s_mov_b32 s3, s98")
        a("    s_add_u32 s68, s50, 0x300000\n    s_addc_u32 s69, s51, 0\n    s_mov_b32 s70, 0x200000\n    s_mov_b32 s71, 0x00020000")
        a("    s_lshl_b32 s98, s2, 2\n    s_add_u32 s98, s98, s49\n    s_lshl_b32 s98, s98, 7")
    a("    s_mul_i32 s52, s%d, %d\n    s_add_u32 s52, s50, s52\n    s_addc_u32 s53, s51, 0\n    s_mov_b32 s54, %d\n    s_mov_b32 s55, 0x00020000" % (sXC, WIMG, WIMG))
    a("    s_lshl_b32 s%d, s%d, 5" % (sXC, sXC))
    prologue_roles(a, cfg)
    a("    s_sub_u32 s%d, s%d, %d" % (sWIN, 99 if cfg.stamp else 3, 2 * WSTEP(cfg)))
    a("    s_mov_b32 s19, %d\n    s_mov_b32 s18, 0" % XBYTES)
    for rho in range(0, 8, 2): a("    s_mov_b32 s%d, %d" % (sST(1) + rho, XBYTES))
    hl, b1, b2, tl = make_stream(cfg)
    import re as _re
    if cfg.abl:
        b1 = [l for l in b1 if not _re.search(cfg.abl, l)]; b2 = [l for l in b2 if not _re.search(cfg.abl, l)]
    nv = 0; out = []
    for l in hl:
        m = _re.search(r"@(\d+)\+(\d+)@", l)
        if m: l = l.replace(m.group(0), str(min(63, int(m.group(2)) + nv)))
        if "buffer_" in l: nv += 1
        out.append(l)
    hl = out
    txt = "\n".join(hl)
    assert all(txt.index("L_pub%d:" % k) < txt.index("L_slow%d" % b) for k, b in enumerate(PUBB)) and txt.index("ds_or_b32 v%d, v%d" % (vFA, vNB)) < txt.index("L_slow6")
    def itstamp(slot, bypass=False):
        r = "    s_memtime s[62:63]\n    s_waitcnt lgkmcnt(0)\n    v_mov_b32 v26, s62\n    v_mov_b32 v27, s63\n"
        r += ("    s_lshl_b32 s66, s18, 4\n    s_add_u32 s66, s66, s98\n    v_mov_b32 v28, s66\n" if bypass else "    v_mov_b32 v28, s98\n")
        return r + "    s_mov_b64 exec, 1\n    buffer_store_dwordx2 v[26:27], v28, s[68:71], 0 offen offset:%d\n    s_mov_b64 exec, -1" % (8 * slot)
    def marked(lines, marks):
        o = []; n = 0
        for l in lines:
            if "v_mfma" in l:
                if cfg.stamp and n in marks: o.append(marks[n])
                n += 1
            o.append(l)
        return o
    L += marked(hl, {k: "    s_memtime s[%d:%d]" % (v, v + 1) for k, v in {0: 74, 48: 76, 112: 78, 176: 80, 240: 82, 304: 84}.items()})
    if cfg.stamp:
        a("    s_memtime s[86:87]\n    s_waitcnt lgkmcnt(0)\n    s_add_u32 s66, s98, 0x40000\n    v_mov_b32 v28, s66\n    s_mov_b64 exec, 1")
        for i in range(13):
            a("    v_mov_b32 v26, s%d\n    buffer_store_dword v26, v28, s[68:71], 0 offen offset:%d" % (72 + 2 * i if i < 12 else 3, 4 * i))
        a("    v_mov_b32 v28, s98\n    v_mov_b32 v26, s100\n    v_mov_b32 v27, s101\n    buffer_store_dwordx2 v[26:27], v28, s[68:71], 0 offen")
        a("    v_mov_b32 v26, s22\n    v_mov_b32 v27, s23\n    buffer_store_dwordx2 v[26:27], v28, s[68:71], 0 offen offset:64\n    s_mov_b64 exec, -1")
        a(itstamp(1)); a(itstamp(2))
    a("L_loop:")
    pm = {}
    def dump():
        a("    s_waitcnt lgkmcnt(0)\n    s_add_u32 s66, s98, 0x60000\n    v_mov_b32 v28, s66\n    s_mov_b64 exec, 1")
        for i in range(13): a("    v_mov_b32 v26, s%d\n    buffer_store_dword v26, v28, s[68:71], 0 offen offset:%d" % (72 + 2 * i, 4 * i))
        a("    s_mov_b64 exec, -1")
    if cfg.probe is not None: pm = {cfg.probe + k * cfg.pstep: "    %s s[%d:%d]" % ("s_memrealtime" if cfg.prt else "s_memtime", 72 + 2 * k, 73 + 2 * k) for k in range(13)}
    m1 = {NM: itstamp(3, True), NM - cfg.R + 672: itstamp(6)} if cfg.probe is None else pm
    L += marked(b1, m1)
    a("    s_cmp_eq_u32 s18, 1")
    a("    s_cbranch_scc0 L_more")
    a("L_tail:")
    L += tl
    if cfg.stamp:
        a("    s_waitcnt vmcnt(0)")
        stamp(a, 7); stamp(a, 9, True)
        if cfg.probe is not None and cfg.ppass == 2: dump()
    a("L_end:")
    a("    s_endpgm")
    a("L_more:")
    L += marked(b2, {k - (2 * NM - cfg.R): v for k, v in pm.items()})
    if cfg.stamp and cfg.probe is not None and cfg.ppass == 1: dump()
    if cfg.stamp: a(itstamp(4))
    if cfg.mute: a("    v_mov_b32 v16, 0x30000\n    v_mov_b32 v17, 0x30000\n    v_mov_b32 v18, 0x30000")
    a("    s_mov_b32 s18, 1\n    s_mov_b32 s19, 0\n    s_branch L_loop")
    lines = hl + b1 + b2 + tl
    slow_paths(a)
    fallback(a)
    a("L_code_end:")
    nw = sum(1 for l in lines if 's_waitcnt' in l); nn = sum(1 for l in lines if 's_nop' in l)
    sys.stderr.write("lines=%d waits=%d nops=%d\n" % (len(lines), nw, nn))
    return "\n".join(L) + "\n"

MAIN_DESC = """.amdhsa_kernel %s_kernel
  .amdhsa_next_free_vgpr 512
  .amdhsa_next_free_sgpr 102
  .amdhsa_accum_offset 256
  .amdhsa_group_segment_fixed_size 0
  .amdhsa_kernarg_size 48
  .amdhsa_user_sgpr_count 2
  .amdhsa_user_sgpr_kernarg_segment_ptr 1
  .amdhsa_system_sgpr_workgroup_id_x 1
.end_amdhsa_kernel
""" % NAME

def generate(cfg):
    s = HEADER
    s += "; @launch grid=(256,1,1) block=(256,1,1) lds=163840\n"
    s += '.amdgcn_target "amdgcn-amd-amdhsa--gfx950"\n.text\n'
    s += main_kernel(cfg)
    s += '.section .rodata,"a"\n.p2align 6\n' + MAIN_DESC
    return s

if __name__ == "__main__":
    ap = argparse.ArgumentParser()
    ap.add_argument("-o", default="/code/%s.s" % NAME)
    ap.add_argument("--stamp", action="store_true")
    ap.add_argument("--set", action="append", default=[])
    args = ap.parse_args()
    cfg = Cfg(); cfg.stamp = args.stamp
    for kv in args.set:
        k, v = kv.split("="); setattr(cfg, k, eval(v))
    open(args.o, "w").write(generate(cfg))
```

```python
import re

def regs(kind, base, n=1):
    return [(kind, base + i) for i in range(n)]
def V(b, n=1): return regs('v', b, n)
def A(b, n=1): return regs('a', b, n)
def S(b, n=1): return regs('s', b, n)

def rtxt(kind, base, n=1):
    if n == 1: return "%s%d" % (kind, base)
    return "%s[%d:%d]" % (kind, base, base + n - 1)

COST = dict(dsw1=8, dsw2=12, label=0, bar=12, mfma=8, valu=4, trans=8, perm=8, dsr=4, dsw=20, vld=4, vst=20, vst1=12, salu=4, dma=4, wait=4, nop=4, br=4)
MEMK = ('dsr', 'dsw', 'dsw1', 'dsw2', 'vld', 'vst', 'vst1', 'dma')
DSK = ('dsr', 'dsw', 'dsw1', 'dsw2')
MEM_MFMA_GAP = 8
SHADOW = False

class Op:
    __slots__ = ("text", "kind", "reads", "writes", "cost", "idx", "preds", "succs", "alap", "asap", "pin",
                 "deadline", "earliest", "emitted", "t", "tag", "creads", "passes", "grp", "req", "lat", "emi")
    def __init__(self, text, kind, reads=(), writes=(), deadline=None, earliest=None, tag="", creads=(), passes=8):
        self.text = text; self.kind = kind
        self.reads = list(reads); self.writes = list(writes)
        self.creads = list(creads)
        self.cost = COST[kind]
        self.preds = []; self.succs = []
        self.deadline = deadline; self.earliest = earliest
        self.pin = None; self.emitted = False; self.t = None; self.tag = tag
        self.passes = passes
        self.grp = 'cur'; self.req = None; self.lat = None; self.emi = 0
    def __repr__(self): return self.text

def raw_latency(p, c):
    if p.lat is not None: return p.lat
    if p.kind == 'mfma':
        if c.kind == 'mfma' and set(c.creads) & set(p.writes) and not (set(c.reads) - set(c.creads)) & set(p.writes):
            return 0
        return p.passes * 4 + 40
    if p.kind == 'dsr': return 140
    if p.kind == 'vld': return 4000
    if p.kind == 'dma': return 1200 if c.kind == 'bar' else 4
    if p.kind == 'trans': return 12
    if p.kind in ('valu', 'perm'):
        if c.kind == 'mfma' or c.kind == 'perm': return 12
        return 4
    return 4

def build_dag(ops):
    last_w = {}; readers = {}
    for i, o in enumerate(ops):
        o.idx = i; o.preds = []; o.succs = []
    def edge(p, c, lat):
        if p is c: return
        c.preds.append((p, lat)); p.succs.append((c, lat))
    for o in ops:
        for r in o.reads:
            if r in last_w: edge(last_w[r], o, raw_latency(last_w[r], o))
        for r in o.writes:
            if r in last_w:
                p = last_w[r]
                lat = 4
                if p.kind == 'mfma' and o.kind != 'mfma': lat = p.passes * 4 + 40
                if p.kind == 'mfma' and o.kind == 'mfma': lat = 0 if r in o.creads else p.passes*4+16
                if p.kind in ('dsr', 'vld'): lat = raw_latency(p, o)
                edge(p, o, lat)
            for q in readers.get(r, []):
                lat = 4
                if q.kind == 'mfma': lat = 8
                if q.kind == 'vld' and False: lat = 4
                edge(q, o, lat)
        for r in o.reads:
            readers.setdefault(r, []).append(o)
        for r in o.writes:
            last_w[r] = o; readers[r] = []
    return ops

def schedule(ops, mfma_period=32, budget=24, verbose=False, horizon=None, merge_slack=220, mem_bias=400, urgent=300, dsw_gap=56, vst_gap=60, vst1_gap=28, lds_queue=40, slack=0, short=False):
    build_dag(ops)
    mf = [o for o in ops if o.kind == 'mfma']
    for i, o in enumerate(mf): o.pin = i * mfma_period
    end = len(mf) * mfma_period if horizon is None else horizon
    for o in reversed(ops):
        if o.kind == 'mfma':
            o.alap = o.pin; continue
        a = end + 10000
        for (c, lat) in o.succs:
            a = min(a, c.alap - max(lat, o.cost))
        if o.deadline is not None: a = min(a, o.deadline)
        o.alap = a
    out = []
    t = 0
    ready_t = {}
    npred = {id(o): len(o.preds) for o in ops}
    avail = [o for o in ops if not o.preds and o.kind != 'mfma']
    def rt(o):
        r = 0
        for (p, lat) in o.preds: r = max(r, p.t + lat)
        if o.earliest is not None: r = max(r, o.earliest)
        return r
    hs = State()
    pend = {}
    res = dict(dsw=-999, vst=-999, lds=0)
    def res_ok(o, tt):
        if o.kind == 'dsw' and tt < res['dsw'] + dsw_gap: return False
        if o.kind == 'vst' and tt < res['vst'] + vst_gap: return False
        if o.kind == 'vst1' and tt < res['vst'] + vst1_gap: return False
        if o.kind in DSK and res['lds'] - tt > lds_queue: return False
        return True
    def res_upd(o, tt):
        if o.kind == 'dsw': res['dsw'] = tt
        if o.kind in ('vst', 'vst1'): res['vst'] = tt
        if o.kind in DSK: res['lds'] = max(res['lds'], tt) + (16 if o.kind in ('dsr', 'dsw1') else (24 if o.kind == 'dsw2' else 40))
    pendv = {}
    def extra(o):
        return 4 if any((r in pend or r in pendv) for r in o.reads + o.writes) else 0
    def emit(o, tt):
        o.t = tt; o.emitted = True; out.append(o)
        track(hs, o); res_upd(o, tt)
        hit = [pend[r] for r in o.reads + o.writes if r in pend]
        if hit:
            tmax = max(max(hit), tt - merge_slack)
            for r in [r for r, x in pend.items() if x <= tmax]: del pend[r]
        hit = [pendv[r] for r in o.reads + o.writes if r in pendv]
        if hit:
            tmax = max(max(hit), tt - 3000)
            for r in [r for r, x in pendv.items() if x <= tmax]: del pendv[r]
        if o.kind == 'dsr':
            for r in o.writes:
                if isinstance(r, tuple): pend[r] = tt
        if o.kind == 'vld':
            for r in o.writes: pendv[r] = tt
        for (c, lat) in o.succs:
            npred[id(c)] -= 1
            if npred[id(c)] == 0 and c.kind != 'mfma': avail.append(c)
    def force(o):
        nonlocal t
        need = []
        seen = set()
        def rec(x):
            for (p, lat) in x.preds:
                if not p.emitted and id(p) not in seen:
                    seen.add(id(p)); rec(p); need.append(p)
        rec(o)
        need.sort(key=lambda x: x.idx)
        for p in need:
            assert p.kind != 'mfma', ("backbone order violates deps", o.text, p.text)
            tt = max(t, rt(p)) if False else t
            if p in avail: avail.remove(p)
            tt = max(t, rt(p))
            emit(p, tt); t = tt + p.cost
            stats['forced'] += 1
    stats = dict(forced=0, stall=0)
    pipe_free = 0
    for mi, m in enumerate(mf):
        force(m)
        tt = max(t, pipe_free, rt(m))
        if tt > max(t, pipe_free): stats['stall'] += tt - max(t, pipe_free)
        if tt > pipe_free and mi > 0: stats.setdefault('late', []).append((mi, tt - pipe_free, m.tag))
        emit(m, tt)
        t = tt + m.cost
        pipe_free = tt + m.passes * 4
        nxt = mf[mi + 1] if mi + 1 < len(mf) else None
        limit = pipe_free + slack
        needw = lambda o: any((r in pend or r in pendv) for r in o.reads + o.writes)
        slot0 = None
        if nxt is not None and needw(nxt): slot0 = 'wait'
        else:
            sc = [o for o in avail if o.kind == 'salu' and o.emi <= mi and rt(o) <= t and need_states(hs, o) <= 0]
            sc.sort(key=lambda o: (o.alap, o.idx))
            if sc:
                pick = sc[0]; avail.remove(pick); emit(pick, t - 4); t += pick.cost - 4; slot0 = 'salu'
        shadow = False
        held = set(pend) | set(pendv)
        def xtra(o):
            hit = [r for r in o.reads + o.writes if r in pend or r in pendv]
            if not hit: return 0
            return 0 if (slot0 != 'salu' and all(r in held for r in hit)) else 4
        while True:
            ok = [o for o in avail if o.emi <= mi and rt(o) <= t and need_states(hs, o) <= 0 and res_ok(o, t)]
            mem = [o for o in ok if o.kind in MEMK and t <= tt + m.cost and (xtra(o) == 0 or o.cost <= 4) and (o.kind != 'vst1' or slot0 is None or o.alap <= t - 64)]
            if shadow and t == tt + m.cost + 4: mem = [o for o in ok if o.kind == 'dsr' and xtra(o) == 0]
            oth = [o for o in ok if o.kind not in MEMK and t + o.cost + xtra(o) <= limit]
            mem.sort(key=lambda o: (o.alap, o.idx)); oth.sort(key=lambda o: (o.alap, o.idx))
            pick = None
            if mem and (not oth or mem[0].alap <= oth[0].alap + mem_bias or mem[0].alap <= t + urgent): pick = mem[0]
            elif oth: pick = oth[0]
            elif mem: pick = mem[0]
            if pick is None: break
            avail.remove(pick)
            c = xtra(pick)
            if c == 0 and needw(pick): slot0 = 'wait'
            emit(pick, t + c)
            if pick.kind == 'vst1' and SHADOW:
                shadow = True; pipe_free = max(pipe_free, t + c + 12 + (4 if slot0 else 0)); limit = t + c + 12; t += 4 + c; slot0 = slot0 or 'salu'
                continue
            t += pick.cost + c
            if nxt is not None and limit == pipe_free + slack and xtra(nxt): limit -= 4
    while avail:
        avail.sort(key=lambda o: (o.alap, o.idx))
        o = avail.pop(0)
        tt = max(t, rt(o)); emit(o, tt); t = tt + o.cost
    assert all(o.emitted for o in ops), [o.text for o in ops if not o.emitted][:5]
    stats['end'] = t; stats['pipe_end'] = pipe_free
    return out, stats

VALU_KINDS = ('valu', 'trans', 'perm')

class State:
    def __init__(self):
        self.pos = 0
        self.lastw = {}
        self.cread = {}
        self.lgkm = []
        self.vm = []
        self.pend = {}
        self.time = 0
        self.seq = 0
        self.mfree = -100
        self.moff = 0

MFMA_STATES = 7
def need_states(st, o):
    return _need_states(st, o)

def mpos_of(st, o):
    m = st.pos + st.moff
    if o.kind == 'mfma': m = max(m, st.mfree)
    return m

def advance_mfma(st, o):
    if o.kind == 'mfma':
        m = mpos_of(st, o); st.moff = m - st.pos; st.mfree = m + (o.passes - 1)

def _need_states(st, o):
    need = 0
    def req(r, n, table=None):
        nonlocal need
        e = (table or st.lastw).get(r)
        return e
    for r in o.reads:
        e = st.lastw.get(r)
        if e is None: continue
        pos, p, mp = e
        dist = (mpos_of(st, o) - mp - 1) if p.kind == 'mfma' else (st.pos - pos - 1)
        n = 0
        if p.kind == 'mfma':
            if o.kind == 'mfma':
                if r in o.creads and not (r in [x for x in o.reads if x not in o.creads]):
                    same = (p.writes == o.creads)
                    n = 0 if same else p.passes + 2
                else:
                    n = p.passes + 4
            else:
                n = p.passes + 4
        elif p.kind in VALU_KINDS:
            if r[0] in ('v', 'a'):
                if o.kind == 'mfma': n = 2
                elif o.kind == 'perm': n = 2
                elif p.kind == 'trans' and o.kind != 'trans': n = 1
                elif p.kind == 'trans': n = 1
                if 'readlane' in o.text or 'readfirstlane' in o.text: n = max(n, 1)
                if 'dpp' in o.text or 'quad_perm' in o.text or 'row_' in o.text: n = max(n, 2)
            else:
                if o.kind in ('vld', 'vst', 'vst1', 'dma'): n = 5
                elif o.kind in VALU_KINDS: n = 2
                else: n = 2
        elif p.kind == 'salu':
            if r == 'm0' and o.kind in ('dma',): n = 1
        need = max(need, n - dist)
    for r in o.writes:
        e = st.lastw.get(r)
        if e is not None:
            pos, p, mp = e
            dist = (mpos_of(st, o) - mp - 1) if p.kind == 'mfma' else (st.pos - pos - 1)
            if p.kind == 'mfma' and not (o.kind == 'mfma' and r in o.creads and p.writes == o.creads):
                if o.kind == 'mfma':
                    n = p.passes + 2
                else:
                    n = p.passes + 4
                need = max(need, n - dist)
        e = st.cread.get(r)
        if e is not None and o.kind != 'mfma':
            pos, p, mp = e
            dist = mpos_of(st, o) - mp - 1
            need = max(need, (p.passes - 1) - dist)
        e = st.lastw.get(('stdata', r))
        if e is not None:
            pos, p, mp = e
            dist = st.pos - pos - 1
            need = max(need, 2 - dist)
    return need

def track(st, o):
    advance_mfma(st, o)
    mp = st.pos + st.moff
    for r in o.writes:
        if o.kind in ('dsr', 'vld'): st.lastw.pop(r, None)
        else: st.lastw[r] = (st.pos, o, mp)
        st.cread.pop(r, None)
    if o.kind == 'mfma':
        for r in o.creads: st.cread[r] = (st.pos, o, mp)
    st.pos += 1

def finalize(seq, st=None, tbase=0, merge_slack=220, vm_slack=3000, reqs=None, collect=None, exact=False):
    if st is None: st = State()
    lines = []
    def younger(q, sq):
        for k, e_ in enumerate(q):
            if e_[0] == sq: return len(q) - 1 - k
        return None
    for i, o in enumerate(seq):
        if o.t is not None: st.time = (tbase + o.t) if exact else max(st.time, tbase + o.t)
        needl = None; needv = None
        for r in list(o.reads) + list(o.writes):
            e = st.pend.get(r)
            if e is None: continue
            cnt, sq = e
            k = younger(st.lgkm if cnt == 'lgkm' else st.vm, sq)
            if k is None: continue
            if cnt == 'lgkm': needl = k if needl is None else min(needl, k)
            else: needv = k if needv is None else min(needv, k)
        if needl is not None:
            q = st.lgkm; k = needl
            while k > 0:
                cand = q[len(q) - k]
                if cand[1] + merge_slack <= st.time: k -= 1
                else: break
            needl = min(k, 15)
        if needv is not None:
            q = st.vm; k = needv
            while k > 0:
                cand = q[len(q) - k]
                if cand[2] == 'vld' and cand[1] + vm_slack <= st.time: k -= 1
                else: break
            needv = min(k, 63)
        rn = 0
        if reqs is not None:
            rv, rl, rn = reqs[i]
            if rv is not None: needv = rv if needv is None else min(needv, rv)
            if rl is not None: needl = rl if needl is None else min(needl, rl)
        if needl is not None or needv is not None:
            g = getattr(st, 'gap', None)
            hoist = False
            if g is not None and g[5] is lines and (needv is None or needv >= g[3]) and (needl is None or needl >= g[2]):
                first = lines[g[0] + 1].strip() if len(lines) > g[0] + 1 else None
                if first is not None and (g[4] is not None or not (first.startswith("s_") or first.startswith("L_") or first.startswith("buffer_store"))): hoist = True
            if needv is not None: st.vm = st.vm[max(0, len(st.vm) - needv):] if needv > 0 else []
            if needl is not None: st.lgkm = st.lgkm[max(0, len(st.lgkm) - needl):] if needl > 0 else []
            txt = lambda v, l: "    s_waitcnt " + " ".join((["vmcnt(%d)" % v] if v is not None else []) + (["lgkmcnt(%d)" % l] if l is not None else []))
            if hoist:
                hv = None if needv is None else needv - g[3]; hl_ = None if needl is None else needl - g[2]
                mn = lambda x, y: x if y is None else (y if x is None else min(x, y))
                if g[4] is None:
                    lines.insert(g[0] + 1, txt(hv, hl_)); g[4] = (hv, hl_)
                    for tab in (st.lastw, st.cread):
                        for r_, e_ in list(tab.items()):
                            if e_[0] > g[1]: tab[r_] = (e_[0] + 1, e_[1], e_[2] + 1)
                    st.pos += 1
                else:
                    g[4] = (mn(g[4][0], hv), mn(g[4][1], hl_)); lines[g[0] + 1] = txt(*g[4])
            else:
                lines.append(txt(needv, needl))
                if g is not None and g[5] is lines and len(lines) == g[0] + 2: g[4] = (needv, needl)
                st.pos += 1; st.time += 0 if exact else 4
        k = max(need_states(st, o), rn - (1 if (needl is not None or needv is not None) else 0) * 0)
        if collect is not None: collect.append((needv, needl, k))
        while k > 0:
            m = min(k, 16)
            lines.append("    s_nop %d" % (m - 1))
            st.pos += m; st.time += 4 * m; k -= m
        if o.kind == 'label':
            lines.append(o.text); continue
        lines.append("    " + o.text + (("    ; " + o.tag) if o.tag else ""))
        st.seq += 1
        advance_mfma(st, o)
        mp = st.pos + st.moff
        for r in o.writes:
            st.pend.pop(r, None)
            if (o.kind in ('dsr', 'vld', 'dma') and isinstance(r, tuple)) or (o.kind == 'dsw' and isinstance(r, tuple) and r[0] == 'IMG'):
                st.pend[r] = ('lgkm' if o.kind in ('dsr', 'dsw') else 'vm', st.seq)
                st.lastw.pop(r, None)
            else:
                st.lastw[r] = (st.pos, o, mp)
            st.cread.pop(r, None)
        if o.kind == 'mfma':
            for r in o.creads: st.cread[r] = (st.pos, o, mp)
        if o.kind == 'vst' and ('dwordx4' in o.text or 'dwordx3' in o.text):
            for r in o.reads: st.lastw[('stdata', r)] = (st.pos, o, mp)
        if o.kind == 'mfma': st.gap = [len(lines) - 1, st.pos, 0, 0, None, lines]
        elif getattr(st, 'gap', None) is not None:
            if "\n" in o.text: st.gap = None
            elif o.kind in DSK: st.gap[2] += 1
            elif o.kind in ('vld', 'vst', 'vst1', 'dma'): st.gap[3] += 1
        if o.kind in DSK: st.lgkm.append((st.seq, st.time))
        if o.kind in ('vld', 'vst', 'vst1', 'dma'):
            st.vm.append((st.seq, st.time, o.kind)); st.maxvm = max(getattr(st, 'maxvm', 0), len(st.vm))
        if o.kind in DSK: st.maxlg = max(getattr(st, 'maxlg', 0), len(st.lgkm))
        if o.text.startswith("s_waitcnt"):
            m = re.search(r"vmcnt\((\d+)\)", o.text)
            if m:
                k = int(m.group(1)); st.vm = st.vm[max(0, len(st.vm) - k):] if k > 0 else []
            m = re.search(r"lgkmcnt\((\d+)\)", o.text)
            if m:
                k = int(m.group(1)); st.lgkm = st.lgkm[max(0, len(st.lgkm) - k):] if k > 0 else []
        n = 1
        m = re.match(r"s_nop (\d+)", o.text)
        if m: n = int(m.group(1)) + 1
        st.pos += n; st.time += o.cost
    return lines

def merge_reqs(a, b):
    out = []
    for (v1, l1, n1), (v2, l2, n2) in zip(a, b):
        mn = lambda x, y: x if y is None else (y if x is None else min(x, y))
        out.append((mn(v1, v2), mn(l1, l2), max(n1, n2)))
    return out
```

```python
import sys, struct, math, argparse
sys.path.insert(0, "gen"); sys.path.insert(0, "gen")
from sched2 import *

NAME = "standalone__swin_window_attn__vision"
DELTA = 25165824
XBYTES = 100663296
ROWB = 196608
WIMG = 147456
KAPPA = (192 ** -0.5) * math.log2(math.e)
NM = 768
P = 16
def f32hex(x): return "0x%08x" % struct.unpack("<I", struct.pack("<f", x))[0]

HEADER = """; Kernarg layout for this problem (48 bytes, ptrs only, base s[0:1]):
"""

vWB = [1, 2, 3]; vSTO = 11
vMX = [12, 13, 14, 15]; vSM = [20, 21, 22, 23]; vTMP = 16
def vS(kb, tb): return 32 + tb * 16 + kb * 4
def vP(tb, v): return 32 + tb * 8 + v * 4
def vACC(h, i): return 96 + h * 16 + i * 4
def vVB(cb, v): return 128 + cb * 8 + v * 4
def vYB(tb, u=1): return (208 if u & 1 else YB0) + tb * 4
YB0 = 208
def vH(m, tb): return (224, 128, 160)[m] + tb * 8
def aXF(par, tb, s): return par * 96 + (tb * 6 + s) * 4
RING = 15
def aWR(q): return 192 + (q % RING) * 4
sX = 8; sOUT = 12; sLD = 24; sKAP = 40
def sST(par): return 32 + par
sSTE = 52
sWIN = 16

class Cfg:
    ldflag = " nt"; stflag = " sc1"; wflag = ""; wlead = 26; stamp = False
    ldlat = 150; stgd = 40; R = 368; amap = 1; mute = 0; ppass = 1; half = 24; hk = 3; zig = 2; w32 = 1; abl = None; prt = 0
    ldtA = (676, 732, 788, 844, 900, 956, 1012, 1068, 1124, 1180, 1236, 1292)
    stgA = (50, 100, 150, 570, 590, 610, 630, 650, 670, 690, 710, 730)
    ldtB = (742, 798, 854, 910, 966, 1022, 1078, 1134, 1190, 1246, 1302, 1358)
    stgB = (310, 335, 360, 720, 735, 750, 772, 786, 810, 835, 870, 900)
    sttA = ((48, 700, 11.7),); stmA = (0, 1, 2)
    sttB = ((8, 505, 7), (8, 568, 8), (16, 650, 5), (4, 754, 3), (12, 800, 25)); stmB = (0, 1, 2)
    stE = (); stE0 = 0
    hd_x0 = 150; hd_xstep = 22
    n0 = 24; nstep = 6; nlat = 80
    g3c = 1; fold = 1; frag = 0; chain = 1; wsp = 2; wdl = 6; probe = None; l2t = (); l2w = (); l2o = 2048; hop = 128; hopw = 2; pstep = 64; mode = 'nnns'; stt_0 = None; ldt_2 = None; stg_2 = None; xpf = (); xpflag = ""; ab = (); split = 1; pft = 96; pflead = 100; pf0 = 1
    fm = (10, 60); f1 = (30, 80, 130); pace = 3; polls = 400; pollflag = " nt"; psleep = 4; x0pre = 0; m0first = 0; quiet = 0; gate = 1

def stamp(a, idx, rt=False):
    a("    %s s[62:63]" % ("s_memrealtime" if rt else "s_memtime"))
    a("    s_waitcnt lgkmcnt(0)")
    a("    v_mov_b32 v26, s62\n    v_mov_b32 v27, s63\n    v_mov_b32 v28, s98")
    a("    s_mov_b64 exec, 1")
    a("    buffer_store_dwordx2 v[26:27], v28, s[68:71], 0 offen offset:%d" % (idx * 8))
    a("    s_mov_b64 exec, -1")

def mfma(d, a_kind, a, b_kind, b, first, tag=""):
    c = "0" if first else rtxt('v', d, 4)
    cr = [] if first else V(d, 4)
    return Op("v_mfma_f32_16x16x32_bf16 %s, %s, %s, %s" % (rtxt('v', d, 4), rtxt(a_kind, a, 4), rtxt(b_kind, b, 4), c),
              'mfma', reads=regs(a_kind, a, 4) + regs(b_kind, b, 4) + cr, writes=V(d, 4), creads=cr, tag=tag, passes=4)

def wread(q, k, **kw):
    off = k * 1024
    base = vWB[off // 65536]
    return Op("ds_read_b128 %s, v%d offset:%d" % (rtxt('a', aWR(q), 4), base, off % 65536), 'dsr',
              reads=V(base), writes=A(aWR(q), 4), tag="W%d" % k, **kw)

def cvt(dst, s0, s1, **kw):
    return Op("v_cvt_pk_bf16_f32 v%d, v%d, v%d" % (dst, s0, s1), 'valu', reads=V(s0) + V(s1), writes=V(dst), **kw)

XPA = [(tb, m) for tb in range(4) for m in range(3)]
XPB = XPA[:6] + [(tb, m) for m in range(3) for tb in (2, 3)]
XP = (XPA, XPB)
vLDE = [9, 10]; vSTW = 4; vSTR = [5, 6]
def xload(par, j, e, cfg, **kw):
    tb, m = XP[par][j]; d = aXF(par, tb, 2 * m + e)
    o = Op("buffer_load_dwordx4 %s, v%d, s[%d:%d], s%d offen offset:%d%s" %
           (rtxt('a', d, 4), vLDE[e], sX, sX + 3, sLD + 2 * tb, 128 * m, cfg.ldflag), 'vld',
           reads=V(vLDE[e]) + S(sX, 4) + S(sLD + 2 * tb), writes=A(d, 4), **kw)
    o.lat = cfg.ldlat * P
    return o
W32 = False
def staging(par, j, wide=False, **kw):
    tb, m = XP[par][j]; o = []
    vSTW, vSTR = ((16, [17, 18]), (4, [5, 6]))[par]
    keys = []
    for e in range(2):
        for h in range(2):
            d = aXF(par, tb, 2 * m + e) + 2 * h
            if W32 and not wide:
                for c in range(2):
                    keys.append('STG%d%d%d' % (e, h, c))
                    o.append(Op("ds_write_b32 v%d, a%d offset:%d" % (vSTW, d + c, 1024 * h + 512 * e + 4 * c), 'dsw1', reads=V(vSTW) + A(d + c), writes=[keys[-1]], **kw))
            else:
                keys += ['STG%d%d0' % (e, h), 'STG%d%d1' % (e, h)]
                o.append(Op("ds_write_b64 v%d, %s offset:%d" % (vSTW, rtxt('a', d, 2), 1024 * h + 512 * e), 'dsw2', reads=V(vSTW) + A(d, 2), writes=keys[-2:], **kw))
    for sp in range(2):
        d = aXF(par, tb, 2 * m + sp)
        o.append(Op("ds_read2_b64 %s, v%d offset0:0 offset1:128" % (rtxt('a', d, 4), vSTR[sp]), 'dsr',
                    reads=V(vSTR[sp]) + keys, writes=A(d, 4), **kw))
    return o

def vop(text, rd, wr, kind='valu'): return Op(text, kind, rd, wr)

def cross_reduce(o, r, opn, tmp, post):
    a_, b_, c_, d_ = r
    o.append(vop("v_permlane16_swap_b32 v%d, v%d" % (a_, b_), V(a_) + V(b_), V(a_) + V(b_), 'perm'))
    o.append(vop("v_permlane16_swap_b32 v%d, v%d" % (c_, d_), V(c_) + V(d_), V(c_) + V(d_), 'perm'))
    o.append(vop("%s v%d, v%d, v%d" % (opn, a_, a_, b_), V(a_) + V(b_), V(a_)))
    o.append(vop("%s v%d, v%d, v%d" % (opn, c_, c_, d_), V(c_) + V(d_), V(c_)))
    o.append(vop("v_permlane32_swap_b32 v%d, v%d" % (a_, c_), V(a_) + V(c_), V(a_) + V(c_), 'perm'))
    o.append(vop("%s v%d, v%d, v%d" % (opn, a_, a_, c_), V(a_) + V(c_), V(a_)))
    post(a_)
    o.append(vop("v_mov_b32 v%d, v%d" % (c_, a_), V(a_), V(c_)))
    o.append(vop("v_permlane32_swap_b32 v%d, v%d" % (a_, c_), V(a_) + V(c_), V(a_) + V(c_), 'perm'))
    o.append(vop("v_mov_b32 v%d, v%d" % (b_, a_), V(a_), V(b_)))
    o.append(vop("v_mov_b32 v%d, v%d" % (d_, c_), V(c_), V(d_)))
    o.append(vop("v_permlane16_swap_b32 v%d, v%d" % (a_, b_), V(a_) + V(b_), V(a_) + V(b_), 'perm'))
    o.append(vop("v_permlane16_swap_b32 v%d, v%d" % (c_, d_), V(c_) + V(d_), V(c_) + V(d_), 'perm'))

def cross_reduce2(o, r, opn, post):
    a_, b_ = r
    o.append(vop("v_permlane16_swap_b32 v%d, v%d" % (a_, b_), V(a_) + V(b_), V(a_) + V(b_), 'perm'))
    o.append(vop("%s v%d, v%d, v%d" % (opn, a_, a_, b_), V(a_) + V(b_), V(a_)))
    o.append(vop("v_mov_b32 v%d, v%d" % (b_, a_), V(a_), V(b_)))
    o.append(vop("v_permlane32_swap_b32 v%d, v%d" % (a_, b_), V(a_) + V(b_), V(a_) + V(b_), 'perm'))
    o.append(vop("%s v%d, v%d, v%d" % (opn, a_, a_, b_), V(a_) + V(b_), V(a_)))
    post(a_)
    o.append(vop("v_mov_b32 v%d, v%d" % (b_, a_), V(a_), V(b_)))
    o.append(vop("v_permlane16_swap_b32 v%d, v%d" % (a_, b_), V(a_) + V(b_), V(a_) + V(b_), 'perm'))

def softmax(tbs, fold=False):
    o = []
    def red(regs, opn, post):
        if len(tbs) == 4: cross_reduce(o, regs, opn, None, post)
        else: cross_reduce2(o, [regs[t] for t in tbs], opn, post)
    for tb in tbs:
        e = [vS(0, tb) + i for i in range(16)]; m = vMX[tb]
        o.append(vop("v_max3_f32 v%d, v%d, v%d, v%d" % (m, e[0], e[1], e[2]), V(e[0]) + V(e[1]) + V(e[2]), V(m)))
        for i in range(3, 15, 2):
            o.append(vop("v_max3_f32 v%d, v%d, v%d, v%d" % (m, m, e[i], e[i + 1]), V(m) + V(e[i]) + V(e[i + 1]), V(m)))
        o.append(vop("v_max_f32 v%d, v%d, v%d" % (m, m, e[15]), V(m) + V(e[15]), V(m)))
    red(vMX, "v_max_f32", (lambda z: None) if fold else (lambda z: o.append(vop("v_mul_f32 v%d, s%d, v%d" % (z, sKAP, z), V(z) + S(sKAP), V(z)))))
    for tb in tbs:
        e = [vS(0, tb) + i for i in range(16)]; m = vMX[tb]; l = vSM[tb]
        for i in range(16):
            if fold: o.append(vop("v_sub_f32 v%d, v%d, v%d" % (e[i], e[i], m), V(e[i]) + V(m), V(e[i])))
            else: o.append(vop("v_fma_f32 v%d, v%d, s%d, -v%d" % (e[i], e[i], sKAP, m), V(e[i]) + V(m) + S(sKAP), V(e[i])))
            o.append(vop("v_exp_f32 v%d, v%d" % (e[i], e[i]), V(e[i]), V(e[i]), 'trans'))
            if i == 1: o.append(vop("v_add_f32 v%d, v%d, v%d" % (l, e[0], e[1]), V(e[0]) + V(e[1]), V(l)))
            elif i > 1: o.append(vop("v_add_f32 v%d, v%d, v%d" % (l, l, e[i]), V(l) + V(e[i]), V(l)))
    red(vSM, "v_add_f32", lambda z: o.append(vop("v_rcp_f32 v%d, v%d" % (z, z), V(z), V(z), 'trans')))
    for tb in tbs:
        base = vS(0, tb); l = vSM[tb]
        for j in range(8):
            o.append(vop("v_mul_f32 v%d, v%d, v%d" % (base + 2 * j, base + 2 * j, l), V(base + 2 * j) + V(l), V(base + 2 * j)))
            o.append(vop("v_mul_f32 v%d, v%d, v%d" % (base + 2 * j + 1, base + 2 * j + 1, l), V(base + 2 * j + 1) + V(l), V(base + 2 * j + 1)))
            o.append(cvt(vP(tb, 0) + j, base + 2 * j, base + 2 * j + 1))
    return o

FLAG = WIMG + 4 * 2048
vFA = 29; vFL = 30; sFL = 41; vMK = [26, 27, 28]; sXC = 48; NPROD = 24; vNW = 24; vNB = 25
NTASK = 72
PUBB = (1, 2, 3, 4, 5)

def at(o, idx, slack=6):
    o.emi = max(0, idx); o.deadline = max(0, idx + slack) * P; return o

class Builder:
    def __init__(self, cfg, nwin, head, wuse=None):
        self.nwin = nwin; self.head = head; self.own = (0, 'c'); self.cnt = {}
        self.cfg = cfg; self.ops = []; self.nm = 0; self.pending = None
        self.wuse = wuse; self.wseq = []; self.wfirst = []; self.wlast = []; self.nw = 0
        self.ev = []; self.seen = set(); self.marks = {}; self.labels = set()
    def add(self, o, own=None):
        own = own or self.own
        c = self.cnt.get(own, 0); self.cnt[own] = c + 1
        o.grp = own + (c,); self.ops.append(o); return o
    def event(self, idx, fn): self.ev.append((idx, len(self.ev), fn)); self.ev.sort(key=lambda e: e[:2])
    def check(self, key, mask, idx, after):
        cfg = self.cfg
        rd = Op("ds_read_b32 v%d, v%d" % (vFL, vFA), 'dsr', V(vFA) + after, V(vFL), deadline=max(0, idx * P - 200)); rd.emi = max(0, idx - 12)
        rf = Op("v_readfirstlane_b32 s%d, v%d" % (sFL, vFL), 'valu', V(vFL), S(sFL), deadline=idx * P)
        if mask & (mask - 1) == 0:
            br = Op("s_bitcmp1_b32 s%d, %d\n    s_cbranch_scc0 L_slow%d\nL_ok%d:" % (sFL, mask.bit_length() - 1, key, key), 'salu', S(sFL), [('BAR', key)], deadline=idx * P + 16)
        else:
            br = Op("s_andn2_b32 s%d, %d, s%d\n    s_cbranch_scc1 L_slow%d\nL_ok%d:" % (sFL, mask, sFL, key, key), 'salu', S(sFL), [('BAR', key)] + S(sFL), deadline=idx * P + 16)
        br.cost = 8
        for o in (rd, rf, br): self.add(o, (0, 'H'))
    def addm(self, o):
        cfg = self.cfg
        while self.ev and self.ev[0][0] <= self.nm: self.ev.pop(0)[2]()
        if self.wuse is not None:
            while self.nw < len(self.wuse) and self.wuse[self.nw][2] <= self.nm:
                q = self.nw; k, first, emi = self.wuse[q]
                r = wread(q, k, deadline=min(first * P - 150, (emi + cfg.wdl) * P)); r.emi = max(0, emi)
                if self.head and first < NM:
                    key = min(k // 12, 6)
                    if key not in self.seen:
                        self.seen.add(key)
                        self.check(key, (1 << key) if key < 6 else 0x3c0, max(0, emi - 2),
                                   [('FS', j) for j in range(5) if key >= PUBB[j]] + ([('FS', 5)] if key == 6 else []))
                    r.reads.append(('BAR', key))
                if self.head and self.nm == 0 and q < 8: r.writes.append('W0G%d' % q); o.reads.append('W0G%d' % q)
                self.add(r, (first // NM, 'w')); self.nw += 1
        self.nm += 1; return self.add(o)
    def w_new(self, k):
        self.wseq.append(k); self.wfirst.append(self.nm); self.wlast.append(self.nm); return len(self.wseq) - 1
    def run_pending(self):
        if self.pending is not None:
            p = self.pending; self.pending = None; p()
    def g3(self, u, tbs):
        for tb in tbs:
            for ki, kb in enumerate([3, 2, 1, 0] if self.cfg.zig > 1 and tb & 1 else [0, 1, 2, 3]):
                us = [u - 1, u] if self.cfg.g3c else [u]
                if self.cfg.zig and ki & 1: us.reverse()
                for i, uu in enumerate(us):
                    self.addm(mfma(vS(kb, tb), 'a', aXF(self.par, kb, uu), 'v', vYB(tb, uu), first=(i == 0 and 0 in us), tag="G3 u%d" % uu))
        if u == 5:
            for o in softmax(tbs, self.cfg.fold): self.add(o)
    def g1(self, cb, tbs):
        hh = cb & 1
        if self.cfg.chain:
            qs = {}
            for i, tb in enumerate(tbs[::-1] if self.cfg.zig > 1 and cb & 1 else tbs):
                for z, s in enumerate(range(5, -1, -1) if self.cfg.zig and i & 1 else range(6)):
                    if s not in qs: qs[s] = self.w_new(6 * cb + s)
                    self.wlast[qs[s]] = self.nm
                    self.addm(mfma(vACC(hh, tb), 'a', aWR(qs[s]), 'a', aXF(self.par, tb, s), first=(z == 0), tag="G1 cb%d s%d" % (cb, s)))
                if i == 1: self.run_pending()
        else:
          for s in range(6):
            q = self.w_new(6 * cb + s)
            for tb in tbs:
                self.wlast[q] = self.nm
                self.addm(mfma(vACC(hh, tb), 'a', aWR(q), 'a', aXF(self.par, tb, s), first=(s == 0), tag="G1 cb%d s%d" % (cb, s)))
            if s == (2 if len(tbs) == 4 else 4): self.run_pending()
        for tb in tbs:
            for j in range(2):
                self.add(cvt(vYB(tb, cb // 2) + 2 * hh + j, vACC(hh, tb) + 2 * j, vACC(hh, tb) + 2 * j + 1))
        if hh == 1 and (not self.cfg.g3c or cb % 4 == 3): self.pending = (lambda u=cb // 2: self.g3(u, tbs))
    def g2(self, cb):
        st = cb & 1
        if self.cfg.chain:
            qs = {}
            for i, kb in enumerate([3, 2, 1, 0] if self.cfg.zig > 1 and cb & 1 else [0, 1, 2, 3]):
                for z, s in enumerate(range(5, -1, -1) if self.cfg.zig and i & 1 else range(6)):
                    if s not in qs: qs[s] = self.w_new(72 + 6 * cb + s)
                    self.wlast[qs[s]] = self.nm
                    self.addm(mfma(vACC(st, kb), 'a', aXF(self.par, kb, s), 'a', aWR(qs[s]), first=(z == 0), tag="G2 cb%d s%d" % (cb, s)))
                if i == 1: self.run_pending()
        else:
          for s in range(6):
            q = self.w_new(72 + 6 * cb + s)
            for kb in range(4):
                self.wlast[q] = self.nm
                self.addm(mfma(vACC(st, kb), 'a', aXF(self.par, kb, s), 'a', aWR(q), first=(s == 0), tag="G2 cb%d s%d" % (cb, s)))
            if s == 2: self.run_pending()
        for v in range(2):
            for j in range(4):
                src = vACC(st, 2 * v + j // 2) + 2 * (j % 2)
                self.add(cvt(vVB(cb, v) + j, src, src + 1))
    def g4(self, m, tbs, sets):
        cfg = self.cfg; n = self.n
        for tb, ob in zip(tbs, sets):
            for z, qi in [(z, q) for q in range(4) for z in range(2)]:
                    q = 3 - qi if cfg.zig > 1 and tb & 1 else qi
                    v = 1 - z if cfg.zig and qi & 1 else z
                    self.addm(mfma(ob + 4 * q, 'v', vP(tb, v), 'v', vVB(4 * m + q, v), first=(z == 0), tag="G4 m%d tb%d" % (m, tb)))
            for r in range(4):
                self.add(cvt(vH(m, tb) + 2 * r, ob + r, ob + 4 + r))
                self.add(cvt(vH(m, tb) + 2 * r + 1, ob + 8 + r, ob + 12 + r))
        stt = [t0 + i * dt for (c, t0, dt) in (cfg.sttB if n & 1 else cfg.sttA) for i in range(c)]
        assert len(stt) == 48
        stm = cfg.stmB if n & 1 else cfg.stmA
        ste = [t0 + i * dt for (c, t0, dt) in cfg.stE for i in range(c)]
        for tb in tbs:
            for r in range(4):
                d = vH(m, tb) + 2 * r
                mk = lambda row: Op("buffer_store_dwordx2 %s, v%d, s[%d:%d], s%d offen offset:%d%s" % (rtxt('v', d, 2), vSTO, sOUT, sOUT + 3, row, r * 384 + m * 128, cfg.stflag), 'vst1',
                                    reads=V(d, 2) + V(vSTO) + S(sOUT, 4) + S(row))
                k = 16 * m + 4 * tb + r
                early = n & 1 and cfg.stE0 <= k < cfg.stE0 + len(ste)
                if early: self.add(at(mk(sSTE + tb), n * NM + int(ste[k - cfg.stE0])), (n, 'e'))
                self.add(at(mk(sST(n & 1) + 2 * tb), n * NM + int(stt[16 * stm.index(m) + 4 * tb + r])), (n, 'L') if early else None)
    def rows(self, base, k, own):
        for rho in range(0, 8, 2):
            self.add(Op("s_add_u32 s%d, s%d, %d" % (base + rho, sWIN, k * WSTEP(self.cfg) + rho * ROWB), 'salu', S(sWIN), S(base + rho)), own)
    def plan_x(self, n):
        cfg = self.cfg; par = n & 1
        for j in range(12):
            tl = (n - 2) * NM + (cfg.ldtA, cfg.ldtB)[par][j]
            if n == 1: tl = max(tl, cfg.hd_x0 + j * cfg.hd_xstep) if tl >= cfg.R else cfg.hd_x0 + j * cfg.hd_xstep
            ts = (n - 1) * NM + (cfg.stgA, cfg.stgB)[par][j]
            def ld(j=j, tl=tl):
                if j == 0: self.rows(sLD, 1 if n == 1 else 2 + par, (n, 'r'))
                for e in range(2): self.add(at(xload(par, j, e, cfg), tl), (n, 'l'))
            def sg(j=j, ts=ts):
                for x in staging(par, j): self.add(at(x, ts, cfg.stgd), (n, 's'))
            if tl < self.nwin * NM: self.event(tl, ld)
            if ts < self.nwin * NM: self.event(ts, sg)
    def plan_head(self):
        cfg = self.cfg
        pubs = [(cfg.fm[0], 0, 12, vMK[0]), (cfg.fm[1], 0, 0, vMK[1]), (cfg.f1[0], 1, 24, vMK[0]), (cfg.f1[1], 1, 12, vMK[1]), (cfg.f1[2], 1, 0, vMK[2])]
        self.pubs = pubs
        for k, (tau, w, c, v) in enumerate(pubs):
            o = Op("s_cmp_eq_u32 s49, %d\n    s_cbranch_scc0 L_pub%d\n    s_waitcnt vmcnt(@%d+%d@)\n    ds_or_b32 v%d, v%d\nL_pub%d:" % (w, k, k, c, vFA, v, k), 'salu',
                   V(vFA) + V(v), [('FS', k)])
            o.cost = 8; self.add(at(o, tau, 4), (0, 'H'))
        def nload():
            keep = self.own; self.own = (0, 'H')
            for k in range(18):
                t = cfg.n0 + k * cfg.nstep
                if k % 4 == 0:
                    self.add(at(Op("s_add_u32 s61, s60, %d" % (k * 1024), 'salu', S(60), S(61)), t - 4))
                    self.add(at(Op("s_mov_b32 m0, s61", 'salu', S(61), ['m0']), t - 2))
                o = Op("buffer_load_dwordx4 v1, s[52:55], s61 offen offset:%d%s lds" % ((k % 4) * 1024, cfg.wflag), 'dma',
                       V(1) + S(52, 4) + S(61) + ['m0', ('BAR', 0), 'DORD'], ['DORD'] + ([('IMG', 0)] if k == 17 else []))
                self.add(at(o, t))
            self.add(at(Op("ds_or_b32 v%d, v%d" % (vFA, vNB), 'dsw1', V(vFA) + V(vNB) + [('IMG', 0)], [('FS', 5)]), cfg.n0 + 17 * cfg.nstep + cfg.nlat, 10))
            self.own = keep
        self.event(1, nload)
    def build(self):
        cfg = self.cfg
        if self.head: self.plan_head()
        for n in range(1, self.nwin + 2): self.plan_x(n)
        ALL = [0, 1, 2, 3]; SETS = [64, 80, 96, 112]
        for n in range(self.nwin):
            self.n = n; self.par = n & 1; self.own = (n, 'c')
            if n & 1 == 0:
                self.add(Op("s_add_u32 s%d, s%d, %d" % (sWIN, sWIN, 2 * WSTEP(cfg)), 'salu', S(sWIN), S(sWIN)))
                self.event(n * NM + 660, lambda n=n: self.add(at(Op("s_mov_b32 s%d, s19" % (sX + 2), 'salu', S(19), S(sX + 2)), n * NM + 660), (n, 'x')))
            self.event(n * NM + (400 if n & 1 else 600), lambda n=n: self.rows(sST(n & 1), n & 1, (n, 't')))
            if n & 1:
                def erows(n=n):
                    for tb in range(4):
                        self.add(Op("s_add_u32 s%d, s%d, s19" % (sSTE + tb, sST(1) + 2 * tb), 'salu', S(sST(1) + 2 * tb) + S(19), S(sSTE + tb)), (n, 't'))
                if cfg.stE: self.event(n * NM + 410, erows)
                for cb in range(12): self.g1(cb, [0, 1])
                for cb in range(12): self.g1(cb, [2, 3])
                for cb in range(4): self.g2(cb)
                self.g4(0, [0, 1], [192, 208])
                for cb in (4, 5): self.g2(cb)
                self.g4(0, [2, 3], [64, 80])
                for cb in (6, 7): self.g2(cb)
                self.g4(1, ALL, [64, 80, 192, 208])
                for cb in range(8, 12): self.g2(cb)
                self.g4(2, ALL, SETS)
            else:
                for cb in range(12): self.g1(cb, ALL)
                for cb in range(12): self.g2(cb)
                for m in range(3): self.g4(m, ALL, SETS)
            assert self.nm == (n + 1) * NM
        assert not self.ev, self.ev
        return self.ops

def WSTEP(cfg): return DELTA if cfg.amap == 0 else 2 * 1572864
def build_all(cfg, nwin, head):
    global YB0, W32
    W32 = cfg.w32
    YB0 = 192 if cfg.g3c else 208
    dry = Builder(cfg, nwin + 1, False); dry.build()
    use = []
    for q, (k, first) in enumerate(zip(dry.wseq, dry.wfirst)):
        s_ = k % 6; emi = first - s_ - cfg.wlead + cfg.wsp * s_
        if q >= RING: emi = max(emi, dry.wlast[q - RING] + 1)
        if use: emi = max(emi, use[-1][2])
        assert q < RING or dry.wlast[q - RING] < emi <= first - 8, (q, dry.wlast[q - RING], emi, first)
        use.append((k, first, emi))
    b = Builder(cfg, nwin, head, use)
    return b.build(), b

def cut_at(ops, n):
    c = 0
    for i, o in enumerate(ops):
        if o.kind == 'mfma':
            if c == n: return i
            c += 1
    return len(ops)

def make_stream(cfg):
    R = cfg.R
    ops, B = build_all(cfg, 8, False)
    order, stats = schedule(ops, **SCHED)
    c0, c1, c2 = (cut_at(order, k * NM + R) for k in (2, 4, 6))
    assert [o.text for o in order[c0:c1]] == [o.text for o in order[c1:c2]], "schedule is not periodic"
    body = order[c1:c2]; t0 = body[0].t
    period = order[c2].t - t0
    before = set((o.grp[0] - 4,) + o.grp[1:] for o in order[:c1] if o.grp[0] >= 4 and not (o.grp[0] == 4 and o.grp[1] in 'lrs'))
    ex = cut_at(body, 2 * NM - R)
    tail = [o for o in order[c1 + ex:] if o.grp[0] == 5 and o.grp[1] != 'L']
    assert not any(o.grp[0] == 5 and o.grp[1] == 'L' for o in body[:ex]) and not any(o.grp[1] == 'e' for o in body[ex:])
    assert all(o.grp[0] >= 5 for o in order[c1 + ex:]) and sum(o.kind == 'vst1' for o in tail) + sum(o.grp[0] == 5 and o.kind == 'vst1' for o in body[:ex]) == 48 and all(o.kind in ('valu', 'vst1') for o in tail), [o.text for o in tail if o.kind not in ('valu', 'vst1')]
    hops, HB = build_all(cfg, 2, True)
    hops = [o for o in hops if o.grp[1] == 'H' or o.grp in before]
    assert len([o for o in hops if o.grp[1] != 'H']) == len(before), (len(hops), len(before))
    horder, hstats = schedule(hops, **SCHED)
    sys.stderr.write("head %s, period %d, tail %d ops\n" % ({k: v for k, v in hstats.items() if k != 'late'}, period, len(tail)))
    for o in body: o.t -= t0
    def clone(o):
        c = Op(o.text, o.kind, o.reads, o.writes, tag=o.tag, creads=o.creads, passes=o.passes); c.grp = o.grp; return c
    tail = [clone(o) for o in tail]
    wr = set(r for o in tail for r in o.writes)
    tail.sort(key=lambda o: 1 if o.kind == 'valu' else (2 if wr & set(o.reads) else 0))
    parts = {1: body[:ex], 2: body[ex:]}
    def run(reqs, collect):
        st = State(); hl = finalize(horder, st, exact=True)
        out = {}; tb = hstats['end']
        for key in (1, 2, 1):
            c = [] if collect is not None else None
            ln = finalize(parts[key], st, tbase=tb, reqs=(reqs.get(key) if reqs else None), collect=c, exact=True)
            if collect is not None: collect.setdefault(key, []).append(c)
            out.setdefault(key, []).append(ln)
            if key == 2: tb += period
        return st, hl, out
    reqs = None
    for it in range(4):
        col = {}; run(reqs, col)
        reqs = {k: (merge_reqs(v[0], v[1]) if len(v) > 1 else v[0]) for k, v in col.items()}
    st, hl, out = run(reqs, None)
    assert out[1][0] == out[1][1], "waits are not stable"
    st.time = 10 ** 9
    tl = finalize(tail, st)
    return hl, out[1][0], out[2][0], tl

def raw_setup(a):
    a("""    s_cmp_ge_u32 s60, 36
    s_cselect_b32 s65, 36, 0
    s_cselect_b32 s97, 768, 0
    s_sub_u32 s65, s60, s65           ; t
    s_mul_i32 s66, s65, 43
    s_lshr_b32 s66, s66, 8            ; u = t / 6
    s_mul_i32 s67, s66, 6
    s_sub_u32 s67, s65, s67           ; s
    s_max_u32 s64, s49, 1
    s_mul_i32 s64, s64, 12288
    s_mul_i32 s61, s66, 36864
    s_add_u32 s61, s61, 384
    s_mul_i32 s62, s67, 36864
    s_add_u32 s62, s62, s97
    s_bitcmp1_b32 s63, 1
    s_cselect_b32 s61, s62, s61
    s_cselect_b32 s64, 0, s64
    s_cselect_b32 s97, 0, s97
    s_movk_i32 s62, 128
    s_movk_i32 s65, 9216
    s_mov_b32 s96, 32
    v_lshrrev_b32 v16, 3, v0
    v_and_b32 v17, 7, v0
    v_bfe_u32 v18, v0, 4, 1
    v_xor_b32 v17, v17, v18
    v_lshlrev_b32 v17, 4, v17
    v_mul_u32_u24 v16, 1152, v16
    s_cmp_eq_u32 s97, 0
    s_mov_b32 s18, 221184
    s_cbranch_scc1 L_raw_rows
    s_mov_b32 s18, 73728
    s_lshl_b32 s61, s66, 6
    s_movk_i32 s62, 6144
    s_movk_i32 s65, 18432
    s_mov_b32 s96, 0
    v_lshrrev_b32 v16, 2, v0
    v_mul_u32_u24 v16, 384, v16
    v_and_b32 v17, 3, v0
    v_lshlrev_b32 v17, 4, v17
L_raw_rows:""")
def raw_issue(a):
    a("""    s_cmp_eq_u32 s97, 0
    s_cselect_b32 s16, s6, s20
    s_cselect_b32 s17, s7, s21
    s_mov_b32 s19, 0x00020000
    s_mov_b32 m0, s64
    s_mov_b32 s97, 4
L_raw_lp:
    v_add_u32 v18, v16, v17
    s_add_u32 s42, s61, s62
    buffer_load_dwordx4 v18, s[16:19], s61 offen lds
    s_add_u32 m0, m0, 1024
    s_add_u32 s41, s42, s62
    buffer_load_dwordx4 v18, s[16:19], s42 offen lds
    s_add_u32 m0, m0, 1024
    s_add_u32 s61, s61, s65
    buffer_load_dwordx4 v18, s[16:19], s41 offen lds
    s_add_u32 m0, m0, 1024
    s_and_b32 s42, s97, 1
    s_mul_i32 s42, s42, s96
    s_lshl_b32 s42, s42, 1
    s_add_u32 s42, s42, s96
    v_xor_b32 v17, s42, v17
    s_sub_u32 s97, s97, 1
    s_cmp_lg_u32 s97, 0
    s_cbranch_scc1 L_raw_lp""")

def produce(a, cfg, waitA):
    a("""    s_mul_i32 s61, s66, 12
    s_add_u32 s61, s61, s67
    s_lshl_b32 s61, s61, 10           ; fragment (2u)*6 + s
    s_add_u32 s62, s61, 6144
    v_mov_b32 v27, v1
    v_bfe_u32 v22, v0, 2, 2           ; i >> 2
    v_and_b32 v23, 3, v0              ; i & 3
    v_lshrrev_b32 v26, 4, v0          ; g
    s_cmp_ge_u32 s60, 36
    s_cbranch_scc0 L_prod_A
    v_mul_u32_u24 v27, 6144, v23
    v_lshlrev_b32 v24, 8, v26
    v_lshlrev_b32 v25, 4, v22
    v_add3_u32 v27, v27, v24, v25
    s_lshr_b32 s61, s66, 1
    s_mul_i32 s61, s61, 24576
    s_and_b32 s62, s66, 1
    s_lshl_b32 s62, s62, 7
    s_add_u32 s61, s61, s62
    s_lshl_b32 s62, s67, 10
    s_add_u32 s61, s61, s62
    s_add_u32 s61, s61, 73728
    s_add_u32 s62, s61, 64
L_prod_A:
    v_mul_u32_u24 v24, 3072, v22
    v_lshl_add_u32 v24, v23, 7, v24
    v_bfe_u32 v25, v0, 1, 1
    v_lshl_add_u32 v25, v22, 1, v25   ; swizzle
    v_xor_b32 v25, v25, v26
    v_lshl_add_u32 v24, v25, 4, v24
    v_xor_b32 v25, 64, v24
    v_lshl_add_u32 v26, v26, 3, v22
    v_lshlrev_b32 v26, 6, v26
    v_lshl_add_u32 v26, v23, 3, v26
    v_add_u32 v26, s64, v26
    s_waitcnt vmcnt(0)""")
    waitA()
    if cfg.stamp: a("    s_memtime s[72:73]")
    def frags(base):
        for km in range(6):
            for t in range(2):
                d = base + 24 * t + 4 * km
                a("    ds_read_b128 v[%d:%d], v%d offset:%d" % (d, d + 3, 24 + (km & 1), (km >> 1) * 1024 + t * 512))
    frags(32)
    a("""    s_cmp_ge_u32 s60, 36
    s_cbranch_scc1 L_prod_N2
    v_add_u32 v24, s64, v24
    v_add_u32 v25, s64, v25""")
    frags(80)
    a("    s_branch L_prod_mm\nL_prod_N2:")
    for km in range(6):
        for h in range(2):
            for q in range(2):
                d = 80 + 24 * h + 4 * km + 2 * q
                a("    ds_read_b64_tr_b16 v[%d:%d], v26 offset:%d" % (d, d + 1, (32 * km + 4 * q) * 64 + 32 * h))
    a("""L_prod_mm:
    s_cmp_ge_u32 s60, 36
    s_cselect_b32 s65, 1.0, s%d       ; scale * log2(e) goes into M
    s_waitcnt lgkmcnt(0)""" % sKAP)
    for h in range(2):
        for km in range(6):
            for t in range(2):
                d = 128 + 8 * h + 4 * t
                c = "0" if km == 0 else "v[%d:%d]" % (d, d + 3)
                a("    v_mfma_f32_16x16x32_bf16 v[%d:%d], v[%d:%d], v[%d:%d], %s" % (d, d + 3, 32 + 24 * t + 4 * km, 35 + 24 * t + 4 * km, 80 + 24 * h + 4 * km, 83 + 24 * h + 4 * km, c))
    for h in range(2):
        if h == 1: a("    s_nop 7")
        if cfg.fold:
            for j in range(8): a("    v_mul_f32 v%d, s65, v%d" % (128 + 8 * h + j, 128 + 8 * h + j))
        for j in range(4):
            a("    v_cvt_pk_bf16_f32 v%d, v%d, v%d" % (144 + 4 * h + j, 128 + 8 * h + 2 * j, 129 + 8 * h + 2 * j))
        a("    buffer_store_dwordx4 v[%d:%d], v27, s[52:55], s%d offen" % (144 + 4 * h, 147 + 4 * h, 61 + h))

GUARD = "    s_sub_u32 s43, s43, 1\n    s_cbranch_scc1 L_end"
def prologue_roles(a, cfg):
    def setbit(v): a("    ds_or_b32 v%d, v%d" % (vFA, v))
    def setimm(bit):
        a("    v_mov_b32 v%d, %d" % (vFL, 1 << bit)); setbit(vFL)
    def waitmask(lab, sreg):
        a(lab + ":")
        a(GUARD)
        a("    ds_read_b32 v%d, v%d" % (vFL, vFA))
        a("    s_waitcnt lgkmcnt(0)")
        a("    v_readfirstlane_b32 s%d, v%d" % (sFL, vFL))
        a("    s_nop 1")
        a("    s_and_b32 s42, s%d, %s" % (sFL, sreg))
        a("    s_cmp_eq_u32 s42, %s" % sreg)
        a("    s_cbranch_scc0 %s" % lab)
    def wdma(n, first=0):
        for q in range(3 * first, 3 * (first + n)):
            a("    s_add_u32 s61, s60, %d" % (q * 4096))
            a("    s_mov_b32 m0, s61")
            a("    s_nop 0")
            for j in range(4):
                a("    buffer_load_dwordx4 v1, s[52:55], s61 offen offset:%d%s lds" % (j * 1024, cfg.wflag))
    xl = [xload(0, j, e, cfg).text for j in range(12) for e in range(2)]
    H1 = cfg.half
    def land(issued):
        a("    v_mov_b32 v16, v4\n    v_mov_b32 v17, v5\n    v_mov_b32 v18, v6")
        for k in range(24):
            if k == cfg.pace or k % 2 == 1 or (k == cfg.hk and issued < 24): a("    s_waitcnt vmcnt(%d)" % (issued - 1 - k))
            if k == cfg.hk and issued < 24:
                for l in xl[issued:]: a("    " + l)
                issued = 24
            if k == cfg.pace: setbit(31)
            if k % 2 == 1:
                for o in staging(0, k // 2, True): a("    " + o.text)
    def arrive(lab):
        if cfg.stamp: a("    s_memtime s[92:93]")
        a("""    v_mov_b32 v32, 1
    s_lshr_b32 s60, s2, 3
    s_add_u32 s60, s60, s%d
    v_mov_b32 v33, s60
    s_mov_b64 exec, 1
    ds_add_rtn_u32 v34, v%d, v32 offset:4
    s_waitcnt lgkmcnt(0)
    v_readfirstlane_b32 s61, v34
    s_nop 1
    s_cmp_eq_u32 s61, 2
    s_cbranch_scc0 %s
    buffer_store_byte v32, v33, s[56:59], 0 offen
    v_mov_b32 v32, 0x400000
    ds_or_b32 v%d, v32
%s:
    s_mov_b64 exec, -1""" % (sXC, vFA, lab, vFA, lab))
    a("    s_lshl_b32 s42, 4096, s49\n    v_mov_b32 v31, s42")
    a("    s_cmp_eq_u32 s49, 0")
    a("    s_cbranch_scc1 L_w0")
    a("    s_cmp_lt_u32 s2, %d" % (NPROD * 8))
    a("    s_cbranch_scc0 L_noprod")
    a("L_prod:")
    def waitA():
        a("    s_bitcmp1_b32 s63, 0\n    s_cbranch_scc1 L_gotA")
        waitmask("L_wA", "0x100000")
        a("L_gotA:")
    produce(a, cfg, waitA)
    a("    s_bitcmp1_b32 s63, 0\n    s_cbranch_scc1 L_fb_next")
    a("    s_cmp_eq_u32 s49, 1")
    a("    s_cbranch_scc0 L_p23")
    if cfg.stamp: a("    s_memtime s[94:95]")
    for l in xl[:H1]: a("    " + l)
    a("    s_waitcnt vmcnt(%d)" % H1)
    arrive("L_nl1")
    a("    s_branch L_land")
    a("L_p23:")
    a("    s_waitcnt vmcnt(0)")
    arrive("L_nl2")
    a("L_noprod:")
    a("    s_lshl_b32 s60, 2048, s49")
    if cfg.gate:
        a("    s_cmp_lt_u32 s2, %d\n    s_cselect_b32 s61, 0x400000, 0    ; this workgroup's flag byte is on its way\n    s_or_b32 s60, s60, s61" % (NPROD * 8))
    if cfg.quiet:
        a("    s_cmp_ge_u32 s49, %d\n    s_cselect_b32 s61, 0x200000, 0\n    s_or_b32 s60, s60, s61" % cfg.quiet)
    waitmask("L_wpace", "s60")
    if cfg.stamp: a("    s_memtime s[94:95]")
    for l in xl[:H1]: a("    " + l)
    a("L_land:")
    land(H1)
    a("L_w1go:")
    if cfg.stamp: a("    s_memtime s[90:91]")
    a("    s_cmp_eq_u32 s49, 1")
    a("    s_cbranch_scc0 L_enter")
    waitmask("L_wgo", "0x200000")
    if cfg.stamp: a("    s_memtime s[88:89]")
    a("    s_mov_b32 s60, 36864")
    wdma(3)
    a("    v_mov_b32 v%d, 8\n    v_mov_b32 v%d, 16\n    v_mov_b32 v%d, 32" % tuple(vMK))
    a("    s_branch L_enter")
    a("L_w0:")
    if cfg.stamp: a("    s_memtime s[94:95]")
    a("    s_waitcnt vmcnt(24)"); setimm(20)
    land(24)
    if cfg.stamp: a("    s_memtime s[90:91]")
    a("""L_poll0:
    s_mov_b32 s61, 0
    v_min_u32 v33, 5, v0
    v_lshlrev_b32 v33, 2, v33
    s_mov_b32 s62, 0x01010101
    v_mov_b32 v34, 0
L_poll:
    buffer_load_dword v34, v33, s[56:59], s%d offen%s      ; samples return in order; each flag byte only ever goes 0 -> 1
    s_add_u32 s61, s61, 1
    s_sleep %d
    v_cmp_ne_u32 vcc, s62, v34
    s_nop 4
    s_cbranch_vccz L_go
    s_cmp_lt_u32 s61, %d
    s_cbranch_scc1 L_poll
    s_waitcnt vmcnt(0)
    s_branch L_fb
L_go:""" % (sXC, cfg.pollflag, cfg.psleep, cfg.polls))
    if cfg.stamp: a("    s_memtime s[88:89]")
    a("    s_mov_b32 s60, 0")
    wdma(1)
    setimm(21)
    if cfg.m0first: a("    s_waitcnt vmcnt(0)"); setimm(0)
    wdma(2, 1)
    a("    v_mov_b32 v%d, 2\n    v_mov_b32 v%d, 4" % (vMK[0], vMK[1]))
    if not cfg.m0first: a("    s_waitcnt vmcnt(24)"); setimm(0)
    a("L_enter:")
    a("    v_mov_b32 v16, v4\n    v_mov_b32 v17, v5\n    v_mov_b32 v18, v6")
    a("    s_mul_i32 s60, s49, 18432\n    s_add_u32 s60, s60, 73728\n    s_lshl_b32 s61, 64, s49\n    v_mov_b32 v%d, s61" % vNB)
    a("    s_waitcnt lgkmcnt(0)")

def fallback(a):
    a("""L_fb:
    s_mov_b32 s60, 0
    s_cmp_lt_u32 s2, %d               ; the sibling waves must be done with the LDS scratch
    s_cbranch_scc0 L_fb_task
L_fbw:
%s
    ds_read_b32 v34, v%d offset:4
    s_waitcnt lgkmcnt(0)
    v_readfirstlane_b32 s61, v34
    s_nop 1
    s_cmp_eq_u32 s61, 3
    s_cbranch_scc0 L_fbw
L_fb_task:
    s_mov_b32 s63, 3
    s_branch L_raw
L_fb_raw:
    s_bitcmp1_b32 s63, 1
    s_mov_b32 s63, 1
    s_cbranch_scc1 L_raw
    s_branch L_prod
L_fb_next:
    s_waitcnt vmcnt(0)
    s_add_u32 s60, s60, 1
    s_cmp_lt_u32 s60, %d
    s_cbranch_scc1 L_fb_task
    s_branch L_go""" % (NPROD * 8, GUARD, vFA, NTASK))

def slow_paths(a):
    for key in range(7):
        a("L_slow%d:" % key)
        a(GUARD)
        a("    ds_read_b32 v%d, v%d" % (vFL, vFA))
        a("    s_waitcnt lgkmcnt(0)")
        a("    v_readfirstlane_b32 s%d, v%d" % (sFL, vFL))
        a("    s_nop 1")
        a("    s_andn2_b32 s%d, %d, s%d" % (sFL, (1 << key) if key < 6 else 0x3c0, sFL))
        a("    s_cbranch_scc1 L_slow%d" % key)
        a("    s_branch L_ok%d" % key)

SCHED = dict(mfma_period=P, dsw_gap=56, vst1_gap=24, short=True)

def main_kernel(cfg):
    L = []
    a = L.append
    K = NAME + "_kernel"
    a(".globl %s\n.p2align 8\n.type %s,@function\n%s:" % (K, K, K))
    a("""    s_cmp_ge_u32 s2, 256
    s_cbranch_scc1 L_end""")
    if cfg.stamp: a("    s_memtime s[100:101]\n    s_memrealtime s[70:71]")
    a("""    s_load_dwordx4 s[4:7], s[0:1], 0        ; x, wqkv
    s_load_dwordx4 s[20:23], s[0:1], 16
    s_load_dwordx4 s[56:59], s[0:1], 32
    v_lshrrev_b32 v16, 6, v0
    v_and_b32 v0, 63, v0
    s_getpc_b64 s[44:45]
L_pc_ref:
    v_readfirstlane_b32 s49, v16            ; wave
    s_mov_b32 s46, L_code_end-L_pc_ref
    s_mov_b32 s47, 0x00020000
    v_lshlrev_b32 v7, 6, v0
    s_lshr_b32 s60, s2, 3
""")
    if cfg.pf0 == 0:
        a("    s_and_b32 s42, s60, 3\n    s_lshl_b32 s42, s42, 2\n    s_add_u32 s42, s42, s49\n    s_lshl_b32 s42, s42, 12\n    buffer_load_dword v8, v7, s[44:47], s42 offen")
    else:
        a("    s_lshl_b32 s42, s60, 2\n    s_add_u32 s42, s42, s49\n    s_lshl_b32 s42, s42, 7\n    v_lshrrev_b32 v8, 1, v0\n    v_and_b32 v7, 1, v0\n    v_lshlrev_b32 v7, 6, v7\n    v_lshl_add_u32 v8, v8, 14, v7\n    buffer_load_dword v8, v8, s[44:47], s42 offen")
    a("""    s_cmp_lt_u32 s60, %d
    s_cbranch_scc0 L_setup
    s_cmp_ge_u32 s60, 12
    s_cselect_b32 s61, 12, 0
    s_cselect_b32 s62, 36, 0
    s_sub_u32 s61, s60, s61                 ; r
    s_and_b32 s64, s61, 1
    s_mul_i32 s64, s64, 3
    s_max_u32 s65, s49, 1
    s_add_u32 s64, s64, s65
    s_sub_u32 s64, s64, 1                   ; u
    s_mul_i32 s64, s64, 6
    s_lshr_b32 s61, s61, 1                  ; s
    s_add_u32 s60, s64, s61
    s_add_u32 s60, s60, s62                 ; task
    s_cmp_eq_u32 s49, 0
    s_cselect_b32 s63, 2, 0
L_raw:""" % NPROD)
    raw_setup(a)
    if cfg.stamp: a("    s_memtime s[72:73]")
    a("    s_waitcnt lgkmcnt(0)")
    if cfg.stamp: a("    s_memtime s[92:93]")
    raw_issue(a)
    a("    s_bitcmp1_b32 s63, 0\n    s_cbranch_scc1 L_fb_raw")
    if cfg.stamp: a("    s_memtime s[98:99]")
    a("""L_setup:
    s_mov_b32 s43, 0x400000
    v_lshlrev_b32 v1, 4, v0                 ; lane*16
    v_add_u32 v2, 0x10000, v1
    v_add_u32 v3, 0x20000, v1
    v_lshrrev_b32 v16, 3, v0
    v_and_b32 v17, 7, v0
    v_lshrrev_b32 v18, 4, v0
    v_xor_b32 v17, v17, v18
    v_lshlrev_b32 v17, 4, v17
    v_mul_u32_u24 v16, 384, v16
    v_add_u32 v9, v16, v17
    v_xor_b32 v10, 64, v9
    v_add_u32 v10, 196608, v10
    s_lshl_b32 s52, s49, 11
    s_add_u32 s52, s52, 147456
    v_lshlrev_b32 v16, 3, v0
    v_add_u32 v4, s52, v16
    v_and_b32 v16, 15, v0                   ; i
    v_lshrrev_b32 v17, 4, v0                ; g
    v_lshrrev_b32 v18, 1, v16
    v_xor_b32 v18, v18, v17
    v_lshlrev_b32 v18, 3, v18
    v_lshl_add_u32 v18, v16, 6, v18
    v_add_u32 v5, s52, v18
    v_xor_b32 v6, 32, v5
    v_lshrrev_b32 v16, 5, v0                ; g>>1
    v_mul_u32_u24 v16, 196608, v16
    v_lshrrev_b32 v17, 4, v0
    v_and_b32 v17, 1, v17
    v_mul_u32_u24 v17, 1536, v17
    v_and_b32 v18, 15, v0
    v_lshlrev_b32 v18, 3, v18
    v_add3_u32 v11, v16, v17, v18
    s_nop 0""")
    if cfg.amap == 0:
        a("    s_lshr_b32 s53, s2, 4\n    s_and_b32 s54, s2, 15")
    else:
        a("    s_and_b32 s53, s2, 7\n    s_lshl_b32 s53, s53, 3\n    s_lshr_b32 s54, s2, 7\n    s_add_u32 s53, s53, s54\n    s_lshr_b32 s54, s2, 3\n    s_and_b32 s54, s54, 15")
    a("""    s_mul_i32 s53, s53, 1572864
    s_lshl_b32 s54, s54, 2
    s_add_u32 s54, s54, s49
    s_mul_i32 s54, s54, 3072
    s_add_u32 s53, s53, s54""")
    for rho in range(0, 8, 2):
        a("    s_add_u32 s%d, s53, %d" % (sLD + rho, rho * ROWB))
    a("    v_mov_b32 v%d, %d\n    v_mov_b32 v30, 0\n    v_mov_b32 v31, 0\n    ds_write_b64 v%d, v[30:31]" % (vFA, FLAG, vFA))
    a("    s_getreg_b32 s%d, hwreg(HW_REG_XCC_ID, 0, 3)" % sXC)
    a("    s_waitcnt lgkmcnt(0)")
    a("    s_mov_b32 s8, s4\n    s_mov_b32 s9, s5\n    s_mov_b32 s10, %d\n    s_mov_b32 s11, 0x00020000" % XBYTES)
    if not cfg.x0pre: a("    s_barrier")
    a("    s_cmp_eq_u32 s49, 0\n    s_cbranch_scc0 L_nox0")
    for j in range(12):
        for e in range(2): a("    " + xload(0, j, e, cfg).text)
    a("L_nox0:")
    if cfg.x0pre: a("    s_barrier")
    a("    s_mov_b32 s3, s53") if not cfg.stamp else a("    s_mov_b32 s99, s53")
    a("    s_mov_b32 s12, s22\n    s_mov_b32 s13, s23\n    s_mov_b32 s14, %d\n    s_mov_b32 s15, 0x00020000" % XBYTES)
    a("    s_mov_b32 s%d, %s" % (sKAP, f32hex(KAPPA)))
    a("    s_mov_b32 s50, s58\n    s_mov_b32 s51, s59")
    a("    s_mov_b32 s58, 256\n    s_mov_b32 s59, 0x00020000")
    if cfg.stamp:
        a("    s_mov_b64 s[22:23], s[70:71]\n    s_mov_b32 s3, s98")
        a("    s_add_u32 s68, s50, 0x300000\n    s_addc_u32 s69, s51, 0\n    s_mov_b32 s70, 0x200000\n    s_mov_b32 s71, 0x00020000")
        a("    s_lshl_b32 s98, s2, 2\n    s_add_u32 s98, s98, s49\n    s_lshl_b32 s98, s98, 7")
    a("    s_mul_i32 s52, s%d, %d\n    s_add_u32 s52, s50, s52\n    s_addc_u32 s53, s51, 0\n    s_mov_b32 s54, %d\n    s_mov_b32 s55, 0x00020000" % (sXC, WIMG, WIMG))
    a("    s_lshl_b32 s%d, s%d, 5" % (sXC, sXC))
    prologue_roles(a, cfg)
    a("    s_sub_u32 s%d, s%d, %d" % (sWIN, 99 if cfg.stamp else 3, 2 * WSTEP(cfg)))
    a("    s_mov_b32 s19, %d\n    s_mov_b32 s18, 0" % XBYTES)
    for rho in range(0, 8, 2): a("    s_mov_b32 s%d, %d" % (sST(1) + rho, XBYTES))
    hl, b1, b2, tl = make_stream(cfg)
    import re as _re
    if cfg.abl:
        b1 = [l for l in b1 if not _re.search(cfg.abl, l)]; b2 = [l for l in b2 if not _re.search(cfg.abl, l)]
    nv = 0; out = []
    for l in hl:
        m = _re.search(r"@(\d+)\+(\d+)@", l)
        if m: l = l.replace(m.group(0), str(min(63, int(m.group(2)) + nv)))
        if "buffer_" in l: nv += 1
        out.append(l)
    hl = out
    txt = "\n".join(hl)
    assert all(txt.index("L_pub%d:" % k) < txt.index("L_slow%d" % b) for k, b in enumerate(PUBB)) and txt.index("ds_or_b32 v%d, v%d" % (vFA, vNB)) < txt.index("L_slow6")
    def itstamp(slot, bypass=False):
        r = "    s_memtime s[62:63]\n    s_waitcnt lgkmcnt(0)\n    v_mov_b32 v26, s62\n    v_mov_b32 v27, s63\n"
        r += ("    s_lshl_b32 s66, s18, 4\n    s_add_u32 s66, s66, s98\n    v_mov_b32 v28, s66\n" if bypass else "    v_mov_b32 v28, s98\n")
        return r + "    s_mov_b64 exec, 1\n    buffer_store_dwordx2 v[26:27], v28, s[68:71], 0 offen offset:%d\n    s_mov_b64 exec, -1" % (8 * slot)
    def marked(lines, marks):
        o = []; n = 0
        for l in lines:
            if "v_mfma" in l:
                if cfg.stamp and n in marks: o.append(marks[n])
                n += 1
            o.append(l)
        return o
    L += marked(hl, {k: "    s_memtime s[%d:%d]" % (v, v + 1) for k, v in {0: 74, 48: 76, 112: 78, 176: 80, 240: 82, 304: 84}.items()})
    if cfg.stamp:
        a("    s_memtime s[86:87]\n    s_waitcnt lgkmcnt(0)\n    s_add_u32 s66, s98, 0x40000\n    v_mov_b32 v28, s66\n    s_mov_b64 exec, 1")
        for i in range(13):
            a("    v_mov_b32 v26, s%d\n    buffer_store_dword v26, v28, s[68:71], 0 offen offset:%d" % (72 + 2 * i if i < 12 else 3, 4 * i))
        a("    v_mov_b32 v28, s98\n    v_mov_b32 v26, s100\n    v_mov_b32 v27, s101\n    buffer_store_dwordx2 v[26:27], v28, s[68:71], 0 offen")
        a("    v_mov_b32 v26, s22\n    v_mov_b32 v27, s23\n    buffer_store_dwordx2 v[26:27], v28, s[68:71], 0 offen offset:64\n    s_mov_b64 exec, -1")
        a(itstamp(1)); a(itstamp(2))
    a("L_loop:")
    pm = {}
    def dump():
        a("    s_waitcnt lgkmcnt(0)\n    s_add_u32 s66, s98, 0x60000\n    v_mov_b32 v28, s66\n    s_mov_b64 exec, 1")
        for i in range(13): a("    v_mov_b32 v26, s%d\n    buffer_store_dword v26, v28, s[68:71], 0 offen offset:%d" % (72 + 2 * i, 4 * i))
        a("    s_mov_b64 exec, -1")
    if cfg.probe is not None: pm = {cfg.probe + k * cfg.pstep: "    %s s[%d:%d]" % ("s_memrealtime" if cfg.prt else "s_memtime", 72 + 2 * k, 73 + 2 * k) for k in range(13)}
    m1 = {NM: itstamp(3, True), NM - cfg.R + 672: itstamp(6)} if cfg.probe is None else pm
    L += marked(b1, m1)
    a("    s_cmp_eq_u32 s18, 1")
    a("    s_cbranch_scc0 L_more")
    a("L_tail:")
    L += tl
    if cfg.stamp:
        a("    s_waitcnt vmcnt(0)")
        stamp(a, 7); stamp(a, 9, True)
        if cfg.probe is not None and cfg.ppass == 2: dump()
    a("L_end:")
    a("    s_endpgm")
    a("L_more:")
    L += marked(b2, {k - (2 * NM - cfg.R): v for k, v in pm.items()})
    if cfg.stamp and cfg.probe is not None and cfg.ppass == 1: dump()
    if cfg.stamp: a(itstamp(4))
    if cfg.mute: a("    v_mov_b32 v16, 0x30000\n    v_mov_b32 v17, 0x30000\n    v_mov_b32 v18, 0x30000")
    a("    s_mov_b32 s18, 1\n    s_mov_b32 s19, 0\n    s_branch L_loop")
    lines = hl + b1 + b2 + tl
    slow_paths(a)
    fallback(a)
    a("L_code_end:")
    nw = sum(1 for l in lines if 's_waitcnt' in l); nn = sum(1 for l in lines if 's_nop' in l)
    sys.stderr.write("lines=%d waits=%d nops=%d\n" % (len(lines), nw, nn))
    return "\n".join(L) + "\n"

MAIN_DESC = """.amdhsa_kernel %s_kernel
  .amdhsa_next_free_vgpr 512
  .amdhsa_next_free_sgpr 102
  .amdhsa_accum_offset 256
  .amdhsa_group_segment_fixed_size 0
  .amdhsa_kernarg_size 48
  .amdhsa_user_sgpr_count 2
  .amdhsa_user_sgpr_kernarg_segment_ptr 1
  .amdhsa_system_sgpr_workgroup_id_x 1
.end_amdhsa_kernel
""" % NAME

def generate(cfg):
    s = HEADER
    s += "; @launch grid=(256,1,1) block=(256,1,1) lds=163840\n"
    s += '.amdgcn_target "amdgcn-amd-amdhsa--gfx950"\n.text\n'
    s += main_kernel(cfg)
    s += '.section .rodata,"a"\n.p2align 6\n' + MAIN_DESC
    return s

if __name__ == "__main__":
    ap = argparse.ArgumentParser()
    ap.add_argument("-o", default="/code/%s.s" % NAME)
    ap.add_argument("--stamp", action="store_true")
    ap.add_argument("--set", action="append", default=[])
    args = ap.parse_args()
    cfg = Cfg(); cfg.stamp = args.stamp
    for kv in args.set:
        k, v = kv.split("="); setattr(cfg, k, eval(v))
    open(args.o, "w").write(generate(cfg))
```
